```python
import torch

def _softmax(x, axis=-1):
    return torch.softmax(x, dim=axis)
def _gelu(x):
    return torch.nn.functional.gelu(x, approximate="tanh")
def _silu(x):
    return torch.nn.functional.silu(x)
def _sigmoid(x):
    return torch.sigmoid(x)
def _layernorm(x, axis=-1, eps=1e-5):
    m = x.mean(dim=axis, keepdim=True)
    v = x.var(dim=axis, keepdim=True, unbiased=False)
    return (x - m) / torch.sqrt(v + eps)
def _scatter_add(tgt, idx, src, axis=0):
    return tgt.clone().index_add_(axis, idx, src)
def _segment_sum(src, seg, n):
    out = torch.zeros((n,) + src.shape[1:], dtype=src.dtype)
    return out.index_add_(0, seg, src)
def _pad(x, pw):
    flat = tuple(v for pair in reversed(pw) for v in pair)
    return torch.nn.functional.pad(x, flat)

kernel_name = 'standalone__gqa_softmax__near_ridge'

def setup_inputs():

    _w = (lambda a: (lambda t: t.to(torch.bfloat16) if t.is_floating_point() else t)(torch.as_tensor(a)))
    B, Hq, Hkv, Sq, Sk, D = 8, 32, 8, 320, 320, 128
    return {
        "q": _w((lambda *s: torch.randn(*s, dtype=torch.bfloat16) * 0.8)(B, Hq, Sq, D)),
        "k": _w((lambda *s: torch.randn(*s, dtype=torch.bfloat16) * 0.8)(B, Hkv, Sk, D)),
        "v": _w((lambda *s: torch.randn(*s, dtype=torch.bfloat16) * 0.05)(B, Hkv, Sk, D)),
    }

def reference(q, k, v):
    B, Hq, Sq, D = q.shape
    Hkv = k.shape[1]
    rep = Hq // Hkv
    k = (lambda x, n, axis: torch.repeat_interleave(x, n, dim=axis))(k, rep, axis=1)
    v = (lambda x, n, axis: torch.repeat_interleave(x, n, dim=axis))(v, rep, axis=1)
    scale = D ** -0.5
    scores = torch.einsum("bhqd,bhkd->bhqk", q, k) * scale
    p = _softmax(scores, axis=-1)
    return torch.einsum("bhqk,bhkd->bhqd", p, v)
```

```python
import sys, math

HEADER = """; Kernarg layout for this problem (48 bytes, ptrs only, base s[0:1]):
; @launch grid=(256,1,1) block=(512,1,1) lds=163840
.amdgcn_target "amdgcn-amd-amdhsa--gfx950"
.text
.globl standalone__gqa_softmax__near_ridge_kernel
.p2align 8
.type standalone__gqa_softmax__near_ridge_kernel,@function
standalone__gqa_softmax__near_ridge_kernel:
"""
FOOTER = """.section .rodata,"a"
.p2align 6
.amdhsa_kernel standalone__gqa_softmax__near_ridge_kernel
  .amdhsa_next_free_vgpr 256
  .amdhsa_next_free_sgpr 64
  .amdhsa_accum_offset 256
  .amdhsa_group_segment_fixed_size 0
  .amdhsa_kernarg_size 48
  .amdhsa_user_sgpr_count 2
  .amdhsa_user_sgpr_kernarg_segment_ptr 1
  .amdhsa_system_sgpr_workgroup_id_x 1
.end_amdhsa_kernel
"""

LDS_V = 81920


class Asm:
    def __init__(self):
        self.lines = []
        self.slot = 0
        self.valu_w = {}
        self.trans_w = {}
        self.mfma_w = {}
        self.mfma_c = {}
        self.store_r = {}
        self.sgpr_valu_w = {}
        self.lds_q = []
        self.vm_q = []
        self.nops = 0

    def raw(self, text, cost=1):
        self.lines.append("    " + text)
        self.slot += cost

    def label(self, name):
        self.lines.append(name + ":")

    def comment(self, t):
        self.lines.append("    ; " + t)

    def need(self, pslot, ws):
        have = self.slot - pslot - 1
        if have < ws:
            k = ws - have
            self.nops += k
            while k > 0:
                n = min(k, 16)
                self.raw("s_nop %d" % (n - 1), cost=n)
                k -= n

    def fence(self):
        self.raw("s_nop 15", cost=16)
        self.valu_w.clear(); self.trans_w.clear(); self.mfma_w.clear(); self.mfma_c.clear()
        self.store_r.clear(); self.sgpr_valu_w.clear()

    MF_RD = {4: 8, 8: 12}
    MF_OV = {4: 6, 8: 10}
    MF_WAR = {4: 3, 8: 7}

    def _chk_read_any(self, regs):
        for r in regs:
            if r in self.mfma_w:
                s, p, _ = self.mfma_w[r]
                self.need(s, self.MF_RD[p])

    def valu(self, text, reads=(), writes=(), trans=False, perm=False, sreads=()):
        self._chk_read_any(reads)
        for r in reads:
            if not trans and r in self.trans_w:
                self.need(self.trans_w[r], 1)
            if perm and r in self.valu_w:
                self.need(self.valu_w[r], 2)
        for r in writes:
            if r in self.mfma_w:
                s, p, _ = self.mfma_w[r]
                self.need(s, self.MF_RD[p])
            if r in self.mfma_c:
                s, p = self.mfma_c[r]
                self.need(s, self.MF_WAR[p])
            if r in self.store_r:
                self.need(self.store_r[r], 2)
        for s in sreads:
            if s in self.sgpr_valu_w:
                self.need(self.sgpr_valu_w[s], 2)
        cur = self.slot
        self.raw(text)
        for r in writes:
            self.valu_w[r] = cur
            self.mfma_w.pop(r, None)
            if trans:
                self.trans_w[r] = cur
            else:
                self.trans_w.pop(r, None)

    def readfirstlane(self, sreg, vreg):
        if vreg in self.valu_w:
            self.need(self.valu_w[vreg], 1)
        cur = self.slot
        self.raw("v_readfirstlane_b32 s%d, v%d" % (sreg, vreg))
        self.sgpr_valu_w[sreg] = cur

    def mfma(self, big, d, a, b, czero=False):
        n = 16 if big else 4
        passes = 8 if big else 4
        name = "v_mfma_f32_32x32x16_bf16" if big else "v_mfma_f32_16x16x32_bf16"
        areg = list(range(a, a + 4)); breg = list(range(b, b + 4)); dreg = list(range(d, d + n))
        for r in areg + breg:
            if r in self.valu_w:
                self.need(self.valu_w[r], 2)
            if r in self.mfma_w:
                s, p, _ = self.mfma_w[r]
                self.need(s, self.MF_RD[p])
        if not czero:
            for r in dreg:
                if r in self.valu_w:
                    self.need(self.valu_w[r], 2)
                if r in self.mfma_w:
                    s, p, db = self.mfma_w[r]
                    if not (db == d and p == passes):
                        self.need(s, self.MF_OV[p])
        else:
            for r in dreg:
                if r in self.mfma_w:
                    s, p, db = self.mfma_w[r]
                    self.need(s, self.MF_RD[p])
        cur = self.slot
        c = "0" if czero else "v[%d:%d]" % (d, d + n - 1)
        self.raw("%s v[%d:%d], v[%d:%d], v[%d:%d], %s" % (name, d, d + n - 1, a, a + 3, b, b + 3, c))
        for r in dreg:
            self.mfma_w[r] = (cur, passes, d)
            self.valu_w.pop(r, None); self.trans_w.pop(r, None)
            if not czero:
                self.mfma_c[r] = (cur, passes)

    def ds_read(self, op, dst, nregs, addr, offset, tag):
        self._chk_read_any([addr])
        for r in range(dst, dst + nregs):
            if r in self.mfma_w:
                s, p, _ = self.mfma_w[r]
                self.need(s, self.MF_RD[p])
        assert 0 <= offset < 65536
        self.raw("%s v[%d:%d], v%d offset:%d" % (op, dst, dst + nregs - 1, addr, offset))
        for r in range(dst, dst + nregs):
            self.valu_w.pop(r, None); self.trans_w.pop(r, None); self.mfma_w.pop(r, None)
        self.lds_q.append(tag)

    def wait_lds(self, tag):
        idx = max(i for i, t in enumerate(self.lds_q) if t == tag)
        n = len(self.lds_q) - 1 - idx
        assert n <= 15
        self.raw("s_waitcnt lgkmcnt(%d)" % n)
        self.lds_q = self.lds_q[idx + 1:]

    def vmem(self, text, tag, reads=(), writes=(), sreads=(), store=False):
        self._chk_read_any(reads)
        for r in writes:
            if r in self.mfma_w:
                s, p, _ = self.mfma_w[r]
                self.need(s, self.MF_RD[p])
        for s in sreads:
            if s in self.sgpr_valu_w:
                self.need(self.sgpr_valu_w[s], 5)
        cur = self.slot
        self.raw(text)
        for r in writes:
            self.valu_w.pop(r, None); self.trans_w.pop(r, None); self.mfma_w.pop(r, None)
        if store:
            for r in reads:
                self.store_r[r] = cur
        self.vm_q.append(tag)

    def wait_vm(self, tag):
        idx = max(i for i, t in enumerate(self.vm_q) if t == tag)
        n = len(self.vm_q) - 1 - idx
        assert n <= 63
        self.raw("s_waitcnt vmcnt(%d)" % n)
        self.vm_q = self.vm_q[idx + 1:]

    def text(self):
        return HEADER + "\n".join(self.lines) + "\n" + FOOTER


S0 = 0
O0 = 160
Q0 = 160
KF0 = 192
RING0 = 224
KA0 = 224
VA0 = 244
VM = 248
VL = 249
VOFF = 250
VLANE = 251
VT0 = 252
VT1 = 253
VT2 = 254
VT3 = 255
SQ, SK, SV, SO = 20, 24, 28, 32
SWAVE = 18
SC = 19
RING = 5


def prologue(a):
    a.raw("s_cmp_ge_u32 s2, 256")
    a.raw("s_cbranch_scc1 L_end")
    a.raw("s_load_dwordx4 s[4:7], s[0:1], 0")
    a.raw("s_load_dwordx4 s[8:11], s[0:1], 16")
    a.raw("s_and_b32 s12, s2, 7")
    a.raw("s_lshr_b32 s13, s2, 3")
    a.raw("s_lshr_b32 s14, s13, 2")
    a.raw("s_lshl_b32 s14, s14, 3")
    a.raw("s_add_u32 s14, s14, s12")
    a.raw("s_and_b32 s13, s13, 3")
    a.raw("s_lshl_b32 s15, s14, 2")
    a.raw("s_add_u32 s15, s15, s13")
    a.raw("s_mul_i32 s16, s14, 81920")
    a.raw("s_mul_i32 s17, s15, 81920")
    a.valu("v_lshrrev_b32 v%d, 6, v0" % VT0, [0], [VT0])
    a.valu("v_and_b32 v%d, 63, v0" % VLANE, [0], [VLANE])
    a.readfirstlane(SWAVE, VT0)
    c = math.log2(math.e) / math.sqrt(128.0)
    import struct
    cbits = struct.unpack("<I", struct.pack("<f", c))[0]
    a.raw("s_mov_b32 s%d, 0x%08x" % (SC, cbits))
    a.raw("s_waitcnt lgkmcnt(0)")
    for (srd, lo, off) in ((SQ, 4, 17), (SK, 6, 16), (SV, 8, 16), (SO, 10, 17)):
        a.raw("s_add_u32 s%d, s%d, s%d" % (srd, lo, off))
        a.raw("s_addc_u32 s%d, s%d, 0" % (srd + 1, lo + 1))
        a.raw("s_mov_b32 s%d, 81920" % (srd + 2))
        a.raw("s_mov_b32 s%d, 0x00020000" % (srd + 3))
    a.raw("s_and_b32 s36, s%d, 3" % SWAVE)
    a.raw("s_lshr_b32 s37, s%d, 2" % SWAVE)
    a.raw("s_mul_i32 s38, s36, 80")
    a.raw("s_lshl_b32 s39, s37, 5")
    a.raw("s_add_u32 s38, s38, s39")
    a.raw("s_lshl_b32 s40, s%d, 10" % SWAVE)
    a.raw("s_and_b32 s42, s%d, 1" % SWAVE)
    a.raw("s_lshl_b32 s43, s36, 2")
    L = VLANE
    a.valu("v_and_b32 v%d, 31, v%d" % (VT0, L), [L], [VT0])
    a.valu("v_add_u32 v%d, s38, v%d" % (VT0, VT0), [VT0], [VT0])
    a.valu("v_lshlrev_b32 v%d, 8, v%d" % (VT0, VT0), [VT0], [VT0])
    a.valu("v_lshrrev_b32 v%d, 5, v%d" % (VT1, L), [L], [VT1])
    a.valu("v_lshlrev_b32 v%d, 4, v%d" % (VT1, VT1), [VT1], [VT1])
    a.valu("v_add_u32 v%d, v%d, v%d" % (VOFF, VT0, VT1), [VT0, VT1], [VOFF])
    a.valu("v_lshrrev_b32 v%d, 4, v%d" % (VT0, L), [L], [VT0])
    a.valu("v_and_b32 v%d, 15, v%d" % (VT1, L), [L], [VT1])
    a.valu("v_add_u32 v%d, s43, v%d" % (VT2, VT0), [VT0], [VT2])
    a.valu("v_xor_b32 v%d, v%d, v%d" % (VT2, VT2, VT1), [VT2, VT1], [VT2])
    a.valu("v_lshlrev_b32 v%d, 4, v%d" % (VT2, VT2), [VT2], [VT2])
    a.valu("v_lshl_add_u32 v%d, v%d, 8, v%d" % (VT2, VT0, VT2), [VT0, VT2], [VT2])
    a.valu("v_lshlrev_b32 v%d, 1, v%d" % (VT3, VT0), [VT0], [VT3])
    a.valu("v_or_b32 v%d, s42, v%d" % (VT3, VT3), [VT3], [VT3])
    a.valu("v_lshlrev_b32 v%d, 1, v%d" % (VT3, VT3), [VT3], [VT3])
    a.valu("v_xor_b32 v%d, v%d, v%d" % (VT3, VT3, VT1), [VT3, VT1], [VT3])
    a.valu("v_lshlrev_b32 v%d, 4, v%d" % (VT3, VT3), [VT3], [VT3])
    a.valu("v_lshl_add_u32 v%d, v%d, 8, v%d" % (VT3, VT0, VT3), [VT0, VT3], [VT3])


def q_loads32(a):
    for kk in range(8):
        a.vmem("buffer_load_dwordx4 v[%d:%d], v%d, s[%d:%d], 0 offen offset:%d" % (Q0 + 4 * kk, Q0 + 4 * kk + 3, VOFF, SQ, SQ + 3, 32 * kk),
               "Q", reads=[VOFF], writes=range(Q0 + 4 * kk, Q0 + 4 * kk + 4))


def dma_kv(a):
    for n in range(10):
        a.raw("s_add_u32 m0, s40, %d" % (n * 8192))
        a.raw("s_add_u32 s41, s40, %d" % (n * 8192))
        a.vmem("buffer_load_dwordx4 v%d, s[%d:%d], s41 offen lds" % (VT2, SK, SK + 3), "K%d" % n, reads=[VT2])
    for n in range(10):
        a.raw("s_add_u32 m0, s40, %d" % (n * 8192 + LDS_V))
        a.raw("s_add_u32 s41, s40, %d" % (n * 8192))
        a.vmem("buffer_load_dwordx4 v%d, s[%d:%d], s41 offen lds" % (VT3, SV, SV + 3), "V", reads=[VT3])


def kaddr32(a):
    L = VLANE
    a.valu("v_and_b32 v%d, 15, v%d" % (VT0, L), [L], [VT0])
    a.valu("v_lshrrev_b32 v%d, 5, v%d" % (VT1, L), [L], [VT1])
    a.valu("v_xor_b32 v%d, v%d, v%d" % (VT0, VT0, VT1), [VT0, VT1], [VT0])
    a.valu("v_lshlrev_b32 v%d, 4, v%d" % (VT0, VT0), [VT0], [VT0])
    a.valu("v_and_b32 v%d, 31, v%d" % (VT1, L), [L], [VT1])
    a.valu("v_lshl_or_b32 v%d, v%d, 8, v%d" % (KA0, VT1, VT0), [VT1, VT0], [KA0])
    for kk in range(1, 8):
        a.valu("v_xor_b32 v%d, %d, v%d" % (KA0 + kk, kk << 5, KA0), [KA0], [KA0 + kk])


def vaddr32(a):
    L = VLANE
    a.valu("v_lshrrev_b32 v%d, 5, v%d" % (VT0, L), [L], [VT0])
    a.valu("v_bfe_u32 v%d, v%d, 2, 2" % (VT1, L), [L], [VT1])
    a.valu("v_lshl_or_b32 v%d, v%d, 1, v%d" % (VT2, VT1, VT0), [VT1, VT0], [VT2])
    a.valu("v_bfe_u32 v%d, v%d, 4, 1" % (VT3, L), [L], [VT3])
    a.valu("v_xor_b32 v%d, v%d, v%d" % (VT2, VT2, VT3), [VT2, VT3], [VT2])
    a.valu("v_lshlrev_b32 v%d, 5, v%d" % (VT2, VT2), [VT2], [VT2])
    a.valu("v_lshl_add_u32 v%d, v%d, 2, v%d" % (VT0, VT0, VT1), [VT0, VT1], [VT0])
    a.valu("v_lshl_or_b32 v%d, v%d, 8, v%d" % (VT2, VT0, VT2), [VT0, VT2], [VT2])
    a.valu("v_and_b32 v%d, 3, v%d" % (VT3, L), [L], [VT3])
    a.valu("v_lshl_or_b32 v%d, v%d, 3, v%d" % (VT2, VT3, VT2), [VT3, VT2], [VT2])
    a.valu("v_add_u32 v%d, %d, v%d" % (VA0, LDS_V, VT2), [VT2], [VA0])
    for d in range(1, 4):
        a.valu("v_xor_b32 v%d, %d, v%d" % (VA0 + d, d << 6, VA0), [VA0], [VA0 + d])


def qk32(a, barriers):
    def kread(t, kk):
        if t == 8 and kk == 0:
            for k2 in range(8):
                a.valu("v_add_u32 v%d, 0x10000, v%d" % (KA0 + k2, KA0 + k2), [KA0 + k2], [KA0 + k2])
        a.ds_read("ds_read_b128", KF0 + 4 * kk, 4, KA0 + kk, (t % 8) * 8192, ("K", t, kk))

    def maxops(t):
        ops = []
        for i in range(8):
            r0 = S0 + 16 * t + 2 * i
            ops.append((r0, r0 + 1))
        return ops

    a.valu("v_mov_b32 v%d, 0xff800000" % VM, [], [VM])
    if barriers:
        a.wait_vm("K0")
        a.raw("s_barrier")
    for kk in range(8):
        kread(0, kk)
    for t in range(10):
        if barriers and t < 9:
            a.wait_vm("K%d" % (t + 1))
            a.raw("s_barrier")
        pend = maxops(t - 1) if t > 0 else []
        for kk in range(8):
            a.wait_lds(("K", t, kk))
            a.mfma(True, S0 + 16 * t, KF0 + 4 * kk, Q0 + 4 * kk, czero=(kk == 0))
            if t < 9:
                kread(t + 1, kk)
            if kk >= 4:
                for _ in range(2):
                    if pend:
                        r0, r1 = pend.pop(0)
                        a.valu("v_max3_f32 v%d, v%d, v%d, v%d" % (VM, VM, r0, r1), [VM, r0, r1], [VM])
    for (r0, r1) in maxops(9):
        a.valu("v_max3_f32 v%d, v%d, v%d, v%d" % (VM, VM, r0, r1), [VM, r0, r1], [VM])
    a.valu("v_mov_b32 v%d, v%d" % (VT0, VM), [VM], [VT0])
    a.valu("v_permlane32_swap_b32 v%d, v%d" % (VM, VT0), [VM, VT0], [VM, VT0], perm=True)
    a.valu("v_max_f32 v%d, v%d, v%d" % (VM, VM, VT0), [VM, VT0], [VM])
    a.valu("v_mul_f32 v%d, s%d, v%d" % (VM, SC, VM), [VM], [VM])
    a.valu("v_mov_b32 v%d, 0" % VL, [], [VL])


def sm_work(a, base):
    def f(i):
        return lambda: a.valu("v_fma_f32 v%d, v%d, s%d, -v%d" % (base + i, base + i, SC, VM), [base + i, VM], [base + i])
    def e(i):
        return lambda: a.valu("v_exp_f32 v%d, v%d" % (base + i, base + i), [base + i], [base + i], trans=True)
    def ad(i):
        return lambda: a.valu("v_add_f32 v%d, v%d, v%d" % (VL, VL, base + i), [VL, base + i], [VL])
    def c(i):
        return lambda: a.valu("v_cvt_pk_bf16_f32 v%d, v%d, v%d" % (base + i, base + 2 * i, base + 2 * i + 1),
                              [base + 2 * i, base + 2 * i + 1], [base + i])
    order = [f(0), f(1), f(2), f(3), e(0), f(4), e(1), f(5), e(2), f(6), e(3), f(7), e(4), ad(0), e(5), ad(1), e(6), c(0),
             e(7), ad(2), ad(3), c(1), ad(4), ad(5), c(2), ad(6), ad(7), c(3)]
    return order


def smpv32(a, q1_prefetch):
    groups = [(t, m) for t in range(10) for m in range(2)]
    mf = [(g, d) for g in range(20) for d in range(4)]

    def vreads(n):
        g, d = mf[n]
        t, m = groups[g]
        if t == 8 and m == 0 and d == 0:
            for d2 in range(4):
                a.valu("v_add_u32 v%d, 0x10000, v%d" % (VA0 + d2, VA0 + d2), [VA0 + d2], [VA0 + d2])
        slot = n % RING
        for u in range(2):
            a.ds_read("ds_read_b64_tr_b16", RING0 + 4 * slot + 2 * u, 2, VA0 + d, (t % 8) * 8192 + m * 4096 + u * 2048, ("V", n))

    for n in range(RING):
        vreads(n)
    for op in sm_work(a, S0 + 0):
        op()
    for g in range(20):
        t, m = groups[g]
        nxt = sm_work(a, S0 + 8 * (g + 1)) if g < 19 else []
        if g == 6 and q1_prefetch:
            q1_prefetch()
        for d in range(4):
            n = 4 * g + d
            a.wait_lds(("V", n))
            a.mfma(True, O0 + 16 * d, RING0 + 4 * (n % RING), S0 + 8 * g, czero=(g == 0))
            if n + RING < 80:
                vreads(n + RING)
            for op in nxt[7 * d: 7 * d + 7]:
                op()


def epilogue32(a):
    a.valu("v_mov_b32 v%d, v%d" % (VT0, VL), [VL], [VT0])
    a.valu("v_permlane32_swap_b32 v%d, v%d" % (VL, VT0), [VL, VT0], [VL, VT0], perm=True)
    a.valu("v_add_f32 v%d, v%d, v%d" % (VL, VL, VT0), [VL, VT0], [VL])
    a.valu("v_rcp_f32 v%d, v%d" % (VL, VL), [VL], [VL], trans=True)
    for d in range(4):
        b = O0 + 16 * d
        for i in range(16):
            a.valu("v_mul_f32 v%d, v%d, v%d" % (b + i, b + i, VL), [b + i, VL], [b + i])
        for i in range(8):
            a.valu("v_cvt_pk_bf16_f32 v%d, v%d, v%d" % (b + i, b + 2 * i, b + 2 * i + 1), [b + 2 * i, b + 2 * i + 1], [b + i])
        for hf in range(2):
            x = b + 4 * hf
            a.valu("v_permlane32_swap_b32 v%d, v%d" % (x, x + 2), [x, x + 2], [x, x + 2], perm=True)
            a.valu("v_permlane32_swap_b32 v%d, v%d" % (x + 1, x + 3), [x + 1, x + 3], [x + 1, x + 3], perm=True)
        for hf in range(2):
            x = b + 4 * hf
            a.vmem("buffer_store_dwordx4 v[%d:%d], v%d, s[%d:%d], 0 offen offset:%d" % (x, x + 3, VOFF, SO, SO + 3, 64 * d + 32 * hf),
                   "ST", reads=list(range(x, x + 4)) + [VOFF], store=True)


Q1 = 0
S1 = 16
O1 = 96
F1 = 128
KA1 = 160
VA1 = 164
VOFF1 = 172
VOFF1S = 173
RING1 = 8


def q1_addr(a):
    L = VLANE
    a.raw("s_add_u32 s44, s38, 64")
    a.valu("v_and_b32 v%d, 15, v%d" % (VT0, L), [L], [VT0])
    a.valu("v_add_u32 v%d, s44, v%d" % (VT0, VT0), [VT0], [VT0])
    a.valu("v_lshrrev_b32 v%d, 4, v%d" % (VT1, L), [L], [VT1])
    a.valu("v_lshlrev_b32 v%d, 4, v%d" % (VT1, VT1), [VT1], [VT1])
    a.valu("v_lshl_add_u32 v%d, v%d, 8, v%d" % (VT3, VT0, VT1), [VT0, VT1], [VT3])


def block16(a):
    L = VLANE
    a.valu("v_and_b32 v%d, 15, v%d" % (VT0, L), [L], [VT0])
    a.valu("v_lshrrev_b32 v%d, 4, v%d" % (VT1, L), [L], [VT1])
    a.valu("v_xor_b32 v%d, v%d, v%d" % (VT2, VT0, VT1), [VT0, VT1], [VT2])
    a.valu("v_lshlrev_b32 v%d, 4, v%d" % (VT2, VT2), [VT2], [VT2])
    a.valu("v_lshl_or_b32 v%d, v%d, 8, v%d" % (KA1, VT0, VT2), [VT0, VT2], [KA1])
    for kk in range(1, 4):
        a.valu("v_xor_b32 v%d, %d, v%d" % (KA1 + kk, kk << 6, KA1), [KA1], [KA1 + kk])
    a.valu("v_bfe_u32 v%d, v%d, 2, 2" % (VT2, L), [L], [VT2])
    a.valu("v_and_b32 v%d, 1, v%d" % (VT3, VT1), [VT1], [VT3])
    a.valu("v_lshl_or_b32 v%d, v%d, 1, v%d" % (VT3, VT2, VT3), [VT2, VT3], [VT3])
    a.valu("v_lshlrev_b32 v%d, 5, v%d" % (VT3, VT3), [VT3], [VT3])
    a.valu("v_lshl_add_u32 v%d, v%d, 2, v%d" % (VT2, VT1, VT2), [VT1, VT2], [VT2])
    a.valu("v_lshl_or_b32 v%d, v%d, 8, v%d" % (VT3, VT2, VT3), [VT2, VT3], [VT3])
    a.valu("v_and_b32 v%d, 3, v%d" % (VT2, L), [L], [VT2])
    a.valu("v_lshl_or_b32 v%d, v%d, 3, v%d" % (VT3, VT2, VT3), [VT2, VT3], [VT3])
    a.valu("v_add_u32 v%d, %d, v%d" % (VA1, LDS_V, VT3), [VT3], [VA1])
    for d in range(1, 8):
        a.valu("v_xor_b32 v%d, %d, v%d" % (VA1 + d, d << 5, VA1), [VA1], [VA1 + d])
    a.valu("v_add_u32 v%d, s44, v%d" % (VT0, VT0), [VT0], [VT0])
    a.valu("v_and_b32 v%d, 1, v%d" % (VT2, VT1), [VT1], [VT2])
    a.valu("v_lshlrev_b32 v%d, 5, v%d" % (VT2, VT2), [VT2], [VT2])
    a.valu("v_lshrrev_b32 v%d, 1, v%d" % (VT3, VT1), [VT1], [VT3])
    a.valu("v_lshl_or_b32 v%d, v%d, 4, v%d" % (VT2, VT3, VT2), [VT3, VT2], [VT2])
    a.valu("v_lshl_add_u32 v%d, v%d, 8, v%d" % (VOFF1S, VT0, VT2), [VT0, VT2], [VOFF1S])
    a.valu("v_mov_b32 v%d, 0xff800000" % VM, [], [VM])
    a.wait_vm("Q1")

    mf = [(t, kk) for t in range(20) for kk in range(4)]

    def kread(n):
        t, kk = mf[n]
        if t == 16 and kk == 0:
            for k2 in range(4):
                a.valu("v_add_u32 v%d, 0x10000, v%d" % (KA1 + k2, KA1 + k2), [KA1 + k2], [KA1 + k2])
        a.ds_read("ds_read_b128", F1 + 4 * (n % RING1), 4, KA1 + kk, (t % 16) * 4096, ("K1", n))
    for n in range(RING1):
        kread(n)
    pend = []
    for n in range(80):
        t, kk = mf[n]
        a.wait_lds(("K1", n))
        a.mfma(False, S1 + 4 * t, F1 + 4 * (n % RING1), Q1 + 4 * kk, czero=(kk == 0))
        if n + RING1 < 80:
            kread(n + RING1)
        if kk == 3 and t >= 2:
            tt = t - 2
            b = S1 + 4 * tt
            a.valu("v_max3_f32 v%d, v%d, v%d, v%d" % (VM, VM, b, b + 1), [VM, b, b + 1], [VM])
            a.valu("v_max3_f32 v%d, v%d, v%d, v%d" % (VM, VM, b + 2, b + 3), [VM, b + 2, b + 3], [VM])
    for tt in (18, 19):
        b = S1 + 4 * tt
        a.valu("v_max3_f32 v%d, v%d, v%d, v%d" % (VM, VM, b, b + 1), [VM, b, b + 1], [VM])
        a.valu("v_max3_f32 v%d, v%d, v%d, v%d" % (VM, VM, b + 2, b + 3), [VM, b + 2, b + 3], [VM])
    for sw in ("v_permlane16_swap_b32", "v_permlane32_swap_b32"):
        a.valu("v_mov_b32 v%d, v%d" % (VT0, VM), [VM], [VT0])
        a.valu("%s v%d, v%d" % (sw, VM, VT0), [VM, VT0], [VM, VT0], perm=True)
        a.valu("v_max_f32 v%d, v%d, v%d" % (VM, VM, VT0), [VM, VT0], [VM])
    a.valu("v_mul_f32 v%d, s%d, v%d" % (VM, SC, VM), [VM], [VM])
    a.valu("v_mov_b32 v%d, 0" % VL, [], [VL])

    mf2 = [(p, d) for p in range(10) for d in range(8)]

    def vreads(n):
        p, d = mf2[n]
        if p == 8 and d == 0:
            for d2 in range(8):
                a.valu("v_add_u32 v%d, 0x10000, v%d" % (VA1 + d2, VA1 + d2), [VA1 + d2], [VA1 + d2])
        slot = n % RING1
        for u in range(2):
            aa = 2 * p + u
            a.ds_read("ds_read_b64_tr_b16", F1 + 4 * slot + 2 * u, 2, VA1 + d, (aa % 16) * 4096, ("V1", n))
    R2 = 7
    for n in range(R2):
        vreads(n)
    for op in sm_work(a, S1):
        op()
    for p in range(10):
        nxt = sm_work(a, S1 + 8 * (p + 1)) if p < 9 else []
        for d in range(8):
            n = 8 * p + d
            a.wait_lds(("V1", n))
            a.mfma(False, O1 + 4 * d, F1 + 4 * (n % RING1), S1 + 8 * p, czero=(p == 0))
            if n + R2 < 80:
                vreads(n + R2)
            lo = (28 * d) // 8
            hi = (28 * (d + 1)) // 8
            for op in nxt[lo:hi]:
                op()
    for sw in ("v_permlane16_swap_b32", "v_permlane32_swap_b32"):
        a.valu("v_mov_b32 v%d, v%d" % (VT0, VL), [VL], [VT0])
        a.valu("%s v%d, v%d" % (sw, VL, VT0), [VL, VT0], [VL, VT0], perm=True)
        a.valu("v_add_f32 v%d, v%d, v%d" % (VL, VL, VT0), [VL, VT0], [VL])
    a.valu("v_rcp_f32 v%d, v%d" % (VL, VL), [VL], [VL], trans=True)
    for i in range(32):
        a.valu("v_mul_f32 v%d, v%d, v%d" % (O1 + i, O1 + i, VL), [O1 + i, VL], [O1 + i])
    for i in range(16):
        a.valu("v_cvt_pk_bf16_f32 v%d, v%d, v%d" % (O1 + i, O1 + 2 * i, O1 + 2 * i + 1), [O1 + 2 * i, O1 + 2 * i + 1], [O1 + i])
    for e in range(4):
        x = O1 + 4 * e
        a.valu("v_permlane16_swap_b32 v%d, v%d" % (x, x + 2), [x, x + 2], [x, x + 2], perm=True)
        a.valu("v_permlane16_swap_b32 v%d, v%d" % (x + 1, x + 3), [x + 1, x + 3], [x + 1, x + 3], perm=True)
    for e in range(4):
        x = O1 + 4 * e
        a.vmem("buffer_store_dwordx4 v[%d:%d], v%d, s[%d:%d], 0 offen offset:%d" % (x, x + 3, VOFF1S, SO, SO + 3, 64 * e),
               "ST", reads=list(range(x, x + 4)) + [VOFF1S], store=True)


def build():
    a = Asm()
    prologue(a)
    a.raw("s_cmp_ge_u32 s%d, 4" % SWAVE)
    a.raw("s_cbranch_scc1 L_bpre")
    q_loads32(a)
    dma_kv(a)
    kaddr32(a)
    qk32(a, barriers=True)
    a.wait_vm("V")
    a.raw("s_barrier")
    a.fence()
    a.raw("s_branch L_common")
    a.label("L_bpre")
    a.vm_q = []; a.lds_q = []
    a.fence()
    dma_kv(a)
    q_loads32(a)
    kaddr32(a)
    for t in range(10):
        a.wait_vm("K%d" % t)
        a.raw("s_barrier")
    a.wait_vm("V")
    a.raw("s_barrier")
    a.wait_vm("Q")
    qk32(a, barriers=False)
    a.fence()
    a.label("L_common")
    a.vm_q = []; a.lds_q = []
    vaddr32(a)

    def q1_prefetch():
        a.raw("s_cmp_ge_u32 s%d, 4" % SWAVE)
        a.raw("s_cbranch_scc1 L_noq1")
        q1_addr(a)
        for kk in range(4):
            a.vmem("buffer_load_dwordx4 v[%d:%d], v%d, s[%d:%d], 0 offen offset:%d" % (Q1 + 4 * kk, Q1 + 4 * kk + 3, VT3, SQ, SQ + 3, 64 * kk),
                   "Q1", reads=[VT3], writes=range(Q1 + 4 * kk, Q1 + 4 * kk + 4))
        a.label("L_noq1")
    smpv32(a, q1_prefetch)
    epilogue32(a)
    a.raw("s_cmp_ge_u32 s%d, 4" % SWAVE)
    a.raw("s_cbranch_scc1 L_end")
    block16(a)
    a.label("L_end")
    a.raw("s_endpgm")
    return a


if __name__ == "__main__":
    a = build()
    out = sys.argv[1] if len(sys.argv) > 1 else "standalone__gqa_softmax__near_ridge.s"
    open(out, "w").write(a.text())
    print("instructions:", len(a.lines), "nops:", a.nops)
```

```python
import sys, math

HEADER = """; Kernarg layout for this problem (48 bytes, ptrs only, base s[0:1]):
;   offset   0: d_in[0] q  shape=(8, 32, 320, 128) dtype=bfloat16 strides=(2621440, 81920, 256, 2) contiguous=True
;   offset   8: d_in[1] k  shape=(8, 8, 320, 128) dtype=bfloat16 strides=(655360, 81920, 256, 2) contiguous=True
;   offset  16: d_in[2] v  shape=(8, 8, 320, 128) dtype=bfloat16 strides=(655360, 81920, 256, 2) contiguous=True
; @launch grid=(256,1,1) block=(512,1,1) lds=163840
.amdgcn_target "amdgcn-amd-amdhsa--gfx950"
.text
.globl standalone__gqa_softmax__near_ridge_kernel
.p2align 8
.type standalone__gqa_softmax__near_ridge_kernel,@function
standalone__gqa_softmax__near_ridge_kernel:
"""
FOOTER = """.section .rodata,"a"
.p2align 6
.amdhsa_kernel standalone__gqa_softmax__near_ridge_kernel
  .amdhsa_next_free_vgpr 256
  .amdhsa_next_free_sgpr 64
  .amdhsa_accum_offset 256
  .amdhsa_group_segment_fixed_size 0
  .amdhsa_kernarg_size 48
  .amdhsa_user_sgpr_count 2
  .amdhsa_user_sgpr_kernarg_segment_ptr 1
  .amdhsa_system_sgpr_workgroup_id_x 1
.end_amdhsa_kernel
"""

LDS_V = 81920
STAMP = "--stamp" in sys.argv
NOEXP = "--noexp" in sys.argv
NOVREAD = "--novread" in sys.argv
NOSM = "--nosm" in sys.argv
NOPV = "--nopv" in sys.argv


class Asm:
    def __init__(self):
        self.lines = []
        self.slot = 0
        self.valu_w = {}
        self.trans_w = {}
        self.mfma_w = {}
        self.mfma_c = {}
        self.store_r = {}
        self.sgpr_valu_w = {}
        self.lds_q = []
        self.vm_q = []
        self.nops = 0

    def raw(self, text, cost=1):
        self.lines.append("    " + text)
        self.slot += cost

    def label(self, name):
        self.lines.append(name + ":")

    def comment(self, t):
        self.lines.append("    ; " + t)

    def need(self, pslot, ws):
        have = self.slot - pslot - 1
        if have < ws:
            k = ws - have
            self.nops += k
            while k > 0:
                n = min(k, 16)
                self.raw("s_nop %d" % (n - 1), cost=n)
                k -= n

    def fence(self):
        self.raw("s_nop 15", cost=16)
        self.valu_w.clear(); self.trans_w.clear(); self.mfma_w.clear(); self.mfma_c.clear()
        self.store_r.clear(); self.sgpr_valu_w.clear()

    MF_RD = {4: 8, 8: 12}
    MF_OV = {4: 6, 8: 10}
    MF_WAR = {4: 3, 8: 7}

    def _chk_read_any(self, regs):
        for r in regs:
            if r in self.mfma_w:
                s, p, _ = self.mfma_w[r]
                self.need(s, self.MF_RD[p])

    def valu(self, text, reads=(), writes=(), trans=False, perm=False, sreads=()):
        self._chk_read_any(reads)
        for r in reads:
            if not trans and r in self.trans_w:
                self.need(self.trans_w[r], 1)
            if perm and r in self.valu_w:
                self.need(self.valu_w[r], 2)
        for r in writes:
            if r in self.mfma_w:
                s, p, _ = self.mfma_w[r]
                self.need(s, self.MF_RD[p])
            if r in self.mfma_c:
                s, p = self.mfma_c[r]
                self.need(s, self.MF_WAR[p])
            if r in self.store_r:
                self.need(self.store_r[r], 2)
        for s in sreads:
            if s in self.sgpr_valu_w:
                self.need(self.sgpr_valu_w[s], 2)
        cur = self.slot
        self.raw(text)
        for r in writes:
            self.valu_w[r] = cur
            self.mfma_w.pop(r, None)
            if trans:
                self.trans_w[r] = cur
            else:
                self.trans_w.pop(r, None)

    def readfirstlane(self, sreg, vreg):
        if vreg in self.valu_w:
            self.need(self.valu_w[vreg], 1)
        cur = self.slot
        self.raw("v_readfirstlane_b32 s%d, v%d" % (sreg, vreg))
        self.sgpr_valu_w[sreg] = cur

    def mfma(self, big, d, a, b, czero=False):
        n = 16 if big else 4
        passes = 8 if big else 4
        name = "v_mfma_f32_32x32x16_bf16" if big else "v_mfma_f32_16x16x32_bf16"
        areg = list(range(a, a + 4)); breg = list(range(b, b + 4)); dreg = list(range(d, d + n))
        for r in areg + breg:
            if r in self.valu_w:
                self.need(self.valu_w[r], 2)
            if r in self.mfma_w:
                s, p, _ = self.mfma_w[r]
                self.need(s, self.MF_RD[p])
        if not czero:
            for r in dreg:
                if r in self.valu_w:
                    self.need(self.valu_w[r], 2)
                if r in self.mfma_w:
                    s, p, db = self.mfma_w[r]
                    if not (db == d and p == passes):
                        self.need(s, self.MF_OV[p])
        else:
            for r in dreg:
                if r in self.mfma_w:
                    s, p, db = self.mfma_w[r]
                    self.need(s, self.MF_RD[p])
        cur = self.slot
        c = "0" if czero else "v[%d:%d]" % (d, d + n - 1)
        self.raw("%s v[%d:%d], v[%d:%d], v[%d:%d], %s" % (name, d, d + n - 1, a, a + 3, b, b + 3, c))
        for r in dreg:
            self.mfma_w[r] = (cur, passes, d)
            self.valu_w.pop(r, None); self.trans_w.pop(r, None)
            if not czero:
                self.mfma_c[r] = (cur, passes)

    def ds_read(self, op, dst, nregs, addr, offset, tag):
        if NOVREAD and "tr" in op:
            return
        self._chk_read_any([addr])
        for r in range(dst, dst + nregs):
            if r in self.mfma_w:
                s, p, _ = self.mfma_w[r]
                self.need(s, self.MF_RD[p])
        assert 0 <= offset < 65536
        self.raw("%s v[%d:%d], v%d offset:%d" % (op, dst, dst + nregs - 1, addr, offset))
        for r in range(dst, dst + nregs):
            self.valu_w.pop(r, None); self.trans_w.pop(r, None); self.mfma_w.pop(r, None)
        self.lds_q.append(tag)

    def wait_lds(self, tag):
        if NOVREAD and tag[0] in ("V", "V1"):
            return
        idx = max(i for i, t in enumerate(self.lds_q) if t == tag)
        n = len(self.lds_q) - 1 - idx
        assert n <= 15
        self.raw("s_waitcnt lgkmcnt(%d)" % n)
        self.lds_q = self.lds_q[idx + 1:]

    def vmem(self, text, tag, reads=(), writes=(), sreads=(), store=False):
        self._chk_read_any(reads)
        for r in writes:
            if r in self.mfma_w:
                s, p, _ = self.mfma_w[r]
                self.need(s, self.MF_RD[p])
        for s in sreads:
            if s in self.sgpr_valu_w:
                self.need(self.sgpr_valu_w[s], 5)
        cur = self.slot
        self.raw(text)
        for r in writes:
            self.valu_w.pop(r, None); self.trans_w.pop(r, None); self.mfma_w.pop(r, None)
        if store:
            for r in reads:
                self.store_r[r] = cur
        self.vm_q.append(tag)

    def wait_vm(self, tag):
        idx = max(i for i, t in enumerate(self.vm_q) if t == tag)
        n = len(self.vm_q) - 1 - idx
        assert n <= 63
        self.raw("s_waitcnt vmcnt(%d)" % n)
        self.vm_q = self.vm_q[idx + 1:]

    def stamp(self, i):
        if not STAMP:
            return
        self.raw("s_memtime s[%d:%d]" % (46 + 2 * i, 47 + 2 * i))
        self.raw("s_waitcnt lgkmcnt(0)")
        self.lds_q = []

    def stamp_store(self):
        if not STAMP:
            return
        self.raw("s_load_dwordx2 s[4:5], s[0:1], 40")
        self.raw("s_waitcnt lgkmcnt(0)")
        self.raw("s_mov_b32 s6, 0x1000000")
        self.raw("s_mov_b32 s7, 0x00020000")
        self.raw("s_lshl_b32 s12, s2, 3")
        self.raw("s_add_u32 s12, s12, s%d" % SWAVE)
        self.raw("s_lshl_b32 s12, s12, 6")
        self.raw("s_nop 7", cost=8)
        for i in range(9):
            self.raw("v_mov_b32 v1, s%d" % (46 + 2 * i))
            self.raw("v_mov_b32 v2, s12")
            self.raw("buffer_store_dword v1, v2, s[4:7], 0 offen offset:%d" % (4 * i))
            self.raw("s_nop 3", cost=4)

    def text(self):
        return HEADER + "\n".join(self.lines) + "\n" + FOOTER


S0 = 0
O0 = 160
Q0 = 160
KF0 = 192
RING0 = 224
KA0 = 224
VA0 = 244
VM = 248
VL = 249
VOFF = 250
VLANE = 251
VT0 = 252
VT1 = 253
VT2 = 254
VL2 = 255
SQ, SK, SV, SO = 20, 24, 28, 32
SWAVE = 18
RING = 5
import struct
CBITS = struct.unpack("<I", struct.pack("<f", math.log2(math.e) / math.sqrt(128.0)))[0]
NCBITS = CBITS ^ 0x80000000


def opt(name, default):
    for x in sys.argv:
        if x.startswith("--%s=" % name):
            return int(x.split("=")[1])
    return default


PRIO = opt("prio", 0)
VAT = opt("vat", 9)
QAT = opt("qat", 9)
Q1AT = opt("q1at", 6)
T0, T1, T2, T3, T4, T5 = 0, 1, 2, 3, 4, 5
VDK, VDV, VDQ = 8, 9, 10
VQA = 16


def V(a, fmt, reads, writes, *args, **kw):
    a.valu(fmt % args, reads, writes, **kw)


def prologue(a):
    a.raw("s_load_dwordx4 s[4:7], s[0:1], 0")
    a.raw("s_load_dwordx4 s[8:11], s[0:1], 16")
    a.raw("s_and_b32 s12, s2, 7")
    a.raw("s_lshr_b32 s13, s2, 3")
    a.raw("s_lshr_b32 s14, s13, 2")
    a.raw("s_lshl_b32 s14, s14, 3")
    a.raw("s_add_u32 s14, s14, s12")
    a.raw("s_and_b32 s13, s13, 3")
    a.raw("s_lshl_b32 s15, s14, 2")
    a.raw("s_add_u32 s15, s15, s13")
    a.raw("s_mul_i32 s16, s14, 81920")
    a.raw("s_mul_i32 s17, s15, 81920")
    V(a, "v_lshrrev_b32 v%d, 6, v0", [0], [VT0], VT0)
    V(a, "v_and_b32 v%d, 63, v0", [0], [VLANE], VLANE)
    a.readfirstlane(SWAVE, VT0)
    L = VLANE
    V(a, "v_lshrrev_b32 v%d, 4, v%d", [L], [T0], T0, L)
    V(a, "v_and_b32 v%d, 15, v%d", [L], [T1], T1, L)
    V(a, "v_xor_b32 v%d, v%d, v%d", [T0, T1], [T2], T2, T0, T1)
    V(a, "v_lshlrev_b32 v%d, 4, v%d", [T2], [T2], T2, T2)
    V(a, "v_lshl_or_b32 v%d, v%d, 8, v%d", [T0, T2], [VDQ], VDQ, T0, T2)
    for i in range(1, 4):
        V(a, "v_xor_b32 v%d, %d, v%d", [VDQ], [VDQ + i], VDQ + i, i << 6, VDQ)
    a.raw("s_and_b32 s36, s%d, 3" % SWAVE)
    a.raw("s_lshr_b32 s37, s%d, 2" % SWAVE)
    a.raw("s_mul_i32 s38, s36, 80")
    a.raw("s_lshl_b32 s39, s37, 5")
    a.raw("s_add_u32 s38, s38, s39")
    a.raw("s_lshl_b32 s40, s%d, 10" % SWAVE)
    a.raw("s_and_b32 s42, s%d, 1" % SWAVE)
    a.raw("s_lshl_b32 s43, s36, 6")
    a.raw("s_lshl_b32 s45, s38, 8")
    a.raw("s_waitcnt lgkmcnt(0)")
    for (srd, lo, off) in ((SQ, 4, 17), (SK, 6, 16), (SV, 8, 16), (SO, 10, 17)):
        a.raw("s_add_u32 s%d, s%d, s%d" % (srd, lo, off))
        a.raw("s_addc_u32 s%d, s%d, 0" % (srd + 1, lo + 1))
        a.raw("s_mov_b32 s%d, 81920" % (srd + 2))
        a.raw("s_mov_b32 s%d, 0x00020000" % (srd + 3))
    a.raw("s_cmp_ge_u32 s%d, 4" % SWAVE)
    a.raw("s_cbranch_scc1 L_noqdma")
    for i in range(8):
        a.raw("s_add_u32 m0, s40, %d" % (i * 8192 + LDS_V))
        a.raw("s_add_u32 s41, s45, %d" % (i * 1024))
        a.vmem("buffer_load_dwordx4 v%d, s[%d:%d], s41 offen lds" % (VDQ + (i & 3), SQ, SQ + 3), "Q", reads=[VDQ + (i & 3)])
    a.label("L_noqdma")
    V(a, "v_xor_b32 v%d, s43, v%d", [VDQ], [VDK], VDK, VDQ)
    for n in range(10):
        a.raw("s_add_u32 m0, s40, %d" % (n * 8192))
        a.raw("s_add_u32 s41, s40, %d" % (n * 8192))
        a.vmem("buffer_load_dwordx4 v%d, s[%d:%d], s41 offen lds" % (VDK, SK, SK + 3), "K%d" % n, reads=[VDK])
    V(a, "v_lshlrev_b32 v%d, 1, v%d", [T0], [T3], T3, T0)
    V(a, "v_or_b32 v%d, s42, v%d", [T3], [T3], T3, T3)
    V(a, "v_lshlrev_b32 v%d, 1, v%d", [T3], [T3], T3, T3)
    V(a, "v_xor_b32 v%d, v%d, v%d", [T3, T1], [T3], T3, T3, T1)
    V(a, "v_lshlrev_b32 v%d, 4, v%d", [T3], [T3], T3, T3)
    V(a, "v_lshl_or_b32 v%d, v%d, 8, v%d", [T0, T3], [VDV], VDV, T0, T3)
    V(a, "v_and_b32 v%d, 31, v%d", [L], [T2], T2, L)
    V(a, "v_lshrrev_b32 v%d, 5, v%d", [L], [T3], T3, L)
    V(a, "v_add_u32 v%d, s38, v%d", [T2], [T4], T4, T2)
    V(a, "v_lshlrev_b32 v%d, 4, v%d", [T3], [T5], T5, T3)
    V(a, "v_lshl_or_b32 v%d, v%d, 8, v%d", [T4, T5], [VOFF], VOFF, T4, T5)
    V(a, "v_xor_b32 v%d, v%d, v%d", [T1, T3], [T4], T4, T1, T3)
    V(a, "v_lshlrev_b32 v%d, 4, v%d", [T4], [T4], T4, T4)
    V(a, "v_lshl_or_b32 v%d, v%d, 8, v%d", [T2, T4], [KA0], KA0, T2, T4)
    for kk in range(1, 8):
        V(a, "v_xor_b32 v%d, %d, v%d", [KA0], [KA0 + kk], KA0 + kk, kk << 5, KA0)
    V(a, "v_lshrrev_b32 v%d, 2, v%d", [T2], [T5], T5, T2)
    V(a, "v_lshl_or_b32 v%d, v%d, 13, v%d", [T5, T4], [T4], T4, T5, T4)
    V(a, "v_and_b32 v%d, 3, v%d", [T2], [T5], T5, T2)
    V(a, "v_lshl_or_b32 v%d, v%d, 8, v%d", [T5, T4], [T4], T4, T5, T4)
    a.raw("s_add_u32 s41, s40, %d" % LDS_V)
    V(a, "v_add_u32 v%d, s41, v%d", [T4], [VQA], VQA, T4)
    for kk in range(1, 8):
        V(a, "v_xor_b32 v%d, %d, v%d", [VQA], [VQA + kk], VQA + kk, kk << 5, VQA)
    V(a, "v_bfe_u32 v%d, v%d, 2, 2", [L], [T2], T2, L)
    V(a, "v_lshl_or_b32 v%d, v%d, 1, v%d", [T2, T3], [T4], T4, T2, T3)
    V(a, "v_bfe_u32 v%d, v%d, 4, 1", [L], [T5], T5, L)
    V(a, "v_xor_b32 v%d, v%d, v%d", [T4, T5], [T4], T4, T4, T5)
    V(a, "v_lshlrev_b32 v%d, 5, v%d", [T4], [T4], T4, T4)
    V(a, "v_lshl_add_u32 v%d, v%d, 2, v%d", [T3, T2], [T5], T5, T3, T2)
    V(a, "v_lshl_or_b32 v%d, v%d, 8, v%d", [T5, T4], [T4], T4, T5, T4)
    V(a, "v_and_b32 v%d, 3, v%d", [L], [T5], T5, L)
    V(a, "v_lshl_or_b32 v%d, v%d, 3, v%d", [T5, T4], [T4], T4, T5, T4)
    V(a, "v_add_u32 v%d, %d, v%d", [T4], [VA0], VA0, LDS_V, T4)
    for d in range(1, 4):
        V(a, "v_xor_b32 v%d, %d, v%d", [VA0], [VA0 + d], VA0 + d, d << 6, VA0)
    V(a, "v_mov_b32 v%d, 0xff800000", [], [VM], VM)
    V(a, "v_mov_b32 v%d, 0", [], [VL], VL)
    V(a, "v_mov_b32 v%d, 0", [], [VL2], VL2)
    V(a, "v_mov_b32 v%d, v%d", [VDV], [VT2], VT2, VDV)


def q_from_lds(a):
    a.wait_vm("Q")
    for kk in range(8):
        a.ds_read("ds_read_b128", Q0 + 4 * kk, 4, VQA + kk, 0, ("Q", kk))
    a.wait_lds(("Q", 7))


def v_dma(a):
    for n in range(10):
        a.raw("s_add_u32 m0, s40, %d" % (n * 8192 + LDS_V))
        a.raw("s_add_u32 s41, s40, %d" % (n * 8192))
        a.vmem("buffer_load_dwordx4 v%d, s[%d:%d], s41 offen lds" % (VT2, SV, SV + 3), "V", reads=[VT2])


def q_loads32(a):
    for kk in range(8):
        a.vmem("buffer_load_dwordx4 v[%d:%d], v%d, s[%d:%d], 0 offen offset:%d" % (Q0 + 4 * kk, Q0 + 4 * kk + 3, VOFF, SQ, SQ + 3, 32 * kk),
               "Q", reads=[VOFF], writes=range(Q0 + 4 * kk, Q0 + 4 * kk + 4))


def qk32(a, barriers):
    def kread(t, kk):
        if t == 8 and kk == 0:
            for k2 in range(8):
                V(a, "v_add_u32 v%d, 0x10000, v%d", [KA0 + k2], [KA0 + k2], KA0 + k2, KA0 + k2)
        a.ds_read("ds_read_b128", KF0 + 4 * kk, 4, KA0 + kk, (t % 8) * 8192, ("K", t, kk))

    def maxops(t):
        return [(S0 + 16 * t + 2 * i, S0 + 16 * t + 2 * i + 1) for i in range(8)]

    if barriers:
        a.wait_vm("K0")
        a.raw("s_barrier")
    for kk in range(8):
        kread(0, kk)
    for t in range(10):
        if barriers and t < 9:
            a.wait_vm("K%d" % (t + 1))
            a.raw("s_barrier")
            if t + 1 == VAT:
                v_dma(a)
        pend = maxops(t - 1) if t > 0 else []
        for kk in range(8):
            a.wait_lds(("K", t, kk))
            a.mfma(True, S0 + 16 * t, KF0 + 4 * kk, Q0 + 4 * kk, czero=(kk == 0))
            if t < 9:
                kread(t + 1, kk)
            if kk >= 4:
                for _ in range(2):
                    if pend:
                        r0, r1 = pend.pop(0)
                        V(a, "v_max3_f32 v%d, v%d, v%d, v%d", [VM, r0, r1], [VM], VM, VM, r0, r1)
    for (r0, r1) in maxops(9):
        V(a, "v_max3_f32 v%d, v%d, v%d, v%d", [VM, r0, r1], [VM], VM, VM, r0, r1)
    V(a, "v_mov_b32 v%d, v%d", [VM], [VT0], VT0, VM)
    V(a, "v_permlane32_swap_b32 v%d, v%d", [VM, VT0], [VM, VT0], VM, VT0, perm=True)
    V(a, "v_max_f32 v%d, v%d, v%d", [VM, VT0], [VM], VM, VM, VT0)
    V(a, "v_mul_f32 v%d, 0x%08x, v%d", [VM], [VM], VM, NCBITS, VM)


def sm_work(a, base):
    def f(i):
        return lambda: V(a, "v_fmamk_f32 v%d, v%d, 0x%08x, v%d", [base + i, VM], [base + i], base + i, base + i, CBITS, VM)
    def e(i):
        return lambda: V(a, ("v_mov_b32 v%d, v%d" if NOEXP else "v_exp_f32 v%d, v%d"), [base + i], [base + i], base + i, base + i, trans=True)
    def ad(i):
        acc = VL if (i & 1) == 0 else VL2
        return lambda: V(a, "v_add_f32 v%d, v%d, v%d", [acc, base + i], [acc], acc, acc, base + i)
    def c(i):
        return lambda: V(a, "v_cvt_pk_bf16_f32 v%d, v%d, v%d", [base + 2 * i, base + 2 * i + 1], [base + i], base + i, base + 2 * i, base + 2 * i + 1)
    order = [f(0), f(1), f(2), f(3), e(0), f(4), e(1), f(5), e(2), f(6), e(3), f(7), e(4), ad(0), e(5), ad(1), e(6), c(0),
             e(7), ad(2), ad(3), c(1), ad(4), ad(5), c(2), ad(6), ad(7), c(3)]
    if NOSM:
        return []
    return order


def smpv32(a, q1_prefetch):
    groups = [(t, m) for t in range(10) for m in range(2)]
    mf = [(g, d) for g in range(20) for d in range(4)]

    def vreads(n):
        g, d = mf[n]
        t, m = groups[g]
        if t == 8 and m == 0 and d == 0:
            for d2 in range(4):
                V(a, "v_add_u32 v%d, 0x10000, v%d", [VA0 + d2], [VA0 + d2], VA0 + d2, VA0 + d2)
        slot = n % RING
        for u in range(2):
            a.ds_read("ds_read_b64_tr_b16", RING0 + 4 * slot + 2 * u, 2, VA0 + d, (t % 8) * 8192 + m * 4096 + u * 2048, ("V", n))

    for n in range(RING):
        vreads(n)
    for op in sm_work(a, S0 + 0):
        op()
    for g in range(20):
        nxt = sm_work(a, S0 + 8 * (g + 1)) if g < 19 else []
        if g == Q1AT and q1_prefetch:
            q1_prefetch()
        for d in range(4):
            n = 4 * g + d
            a.wait_lds(("V", n))
            if not NOPV or g == 0:
                a.mfma(True, O0 + 16 * d, RING0 + 4 * (n % RING), S0 + 8 * g, czero=(g == 0))
            if n + RING < 80:
                vreads(n + RING)
            for op in nxt[7 * d: 7 * d + 7]:
                op()


def epilogue32(a):
    V(a, "v_add_f32 v%d, v%d, v%d", [VL, VL2], [VL], VL, VL, VL2)
    V(a, "v_mov_b32 v%d, v%d", [VL], [VT0], VT0, VL)
    V(a, "v_permlane32_swap_b32 v%d, v%d", [VL, VT0], [VL, VT0], VL, VT0, perm=True)
    V(a, "v_add_f32 v%d, v%d, v%d", [VL, VT0], [VL], VL, VL, VT0)
    V(a, "v_rcp_f32 v%d, v%d", [VL], [VL], VL, VL, trans=True)
    for d in range(4):
        b = O0 + 16 * d
        for i in range(16):
            V(a, "v_mul_f32 v%d, v%d, v%d", [b + i, VL], [b + i], b + i, b + i, VL)
        for i in range(8):
            V(a, "v_cvt_pk_bf16_f32 v%d, v%d, v%d", [b + 2 * i, b + 2 * i + 1], [b + i], b + i, b + 2 * i, b + 2 * i + 1)
        for hf in range(2):
            x = b + 4 * hf
            V(a, "v_permlane32_swap_b32 v%d, v%d", [x, x + 2], [x, x + 2], x, x + 2, perm=True)
            V(a, "v_permlane32_swap_b32 v%d, v%d", [x + 1, x + 3], [x + 1, x + 3], x + 1, x + 3, perm=True)
        for hf in range(2):
            x = b + 4 * hf
            a.vmem("buffer_store_dwordx4 v[%d:%d], v%d, s[%d:%d], 0 offen offset:%d" % (x, x + 3, VOFF, SO, SO + 3, 64 * d + 32 * hf),
                   "ST", reads=list(range(x, x + 4)) + [VOFF], store=True)


Q1 = 0
S1 = 16
O1 = 96
F1 = 128
KA1 = 224
VA1 = 228
VOFF1S = 236
U0, U1, U2, U3 = 237, 238, 239, 240
RING1 = 8


def q1_addr(a):
    L = VLANE
    a.raw("s_add_u32 s44, s38, 64")
    V(a, "v_and_b32 v%d, 15, v%d", [L], [VT0], VT0, L)
    V(a, "v_add_u32 v%d, s44, v%d", [VT0], [VT0], VT0, VT0)
    V(a, "v_lshrrev_b32 v%d, 4, v%d", [L], [VT1], VT1, L)
    V(a, "v_lshlrev_b32 v%d, 4, v%d", [VT1], [VT1], VT1, VT1)
    V(a, "v_lshl_add_u32 v%d, v%d, 8, v%d", [VT0, VT1], [VT2], VT2, VT0, VT1)


def block16(a):
    L = VLANE
    V(a, "v_and_b32 v%d, 15, v%d", [L], [U0], U0, L)
    V(a, "v_lshrrev_b32 v%d, 4, v%d", [L], [U1], U1, L)
    V(a, "v_xor_b32 v%d, v%d, v%d", [U0, U1], [U2], U2, U0, U1)
    V(a, "v_lshlrev_b32 v%d, 4, v%d", [U2], [U2], U2, U2)
    V(a, "v_lshl_or_b32 v%d, v%d, 8, v%d", [U0, U2], [KA1], KA1, U0, U2)
    for kk in range(1, 4):
        V(a, "v_xor_b32 v%d, %d, v%d", [KA1], [KA1 + kk], KA1 + kk, kk << 6, KA1)
    V(a, "v_bfe_u32 v%d, v%d, 2, 2", [L], [U2], U2, L)
    V(a, "v_and_b32 v%d, 1, v%d", [U1], [U3], U3, U1)
    V(a, "v_lshl_or_b32 v%d, v%d, 1, v%d", [U2, U3], [U3], U3, U2, U3)
    V(a, "v_lshlrev_b32 v%d, 5, v%d", [U3], [U3], U3, U3)
    V(a, "v_lshl_add_u32 v%d, v%d, 2, v%d", [U1, U2], [U2], U2, U1, U2)
    V(a, "v_lshl_or_b32 v%d, v%d, 8, v%d", [U2, U3], [U3], U3, U2, U3)
    V(a, "v_and_b32 v%d, 3, v%d", [L], [U2], U2, L)
    V(a, "v_lshl_or_b32 v%d, v%d, 3, v%d", [U2, U3], [U3], U3, U2, U3)
    V(a, "v_add_u32 v%d, %d, v%d", [U3], [VA1], VA1, LDS_V, U3)
    for d in range(1, 8):
        V(a, "v_xor_b32 v%d, %d, v%d", [VA1], [VA1 + d], VA1 + d, d << 5, VA1)
    V(a, "v_add_u32 v%d, s44, v%d", [U0], [U0], U0, U0)
    V(a, "v_and_b32 v%d, 1, v%d", [U1], [U2], U2, U1)
    V(a, "v_lshlrev_b32 v%d, 5, v%d", [U2], [U2], U2, U2)
    V(a, "v_lshrrev_b32 v%d, 1, v%d", [U1], [U3], U3, U1)
    V(a, "v_lshl_or_b32 v%d, v%d, 4, v%d", [U3, U2], [U2], U2, U3, U2)
    V(a, "v_lshl_add_u32 v%d, v%d, 8, v%d", [U0, U2], [VOFF1S], VOFF1S, U0, U2)
    V(a, "v_mov_b32 v%d, 0xff800000", [], [VM], VM)
    V(a, "v_mov_b32 v%d, 0", [], [VL], VL)
    V(a, "v_mov_b32 v%d, 0", [], [VL2], VL2)
    a.wait_vm("Q1")

    mf = [(t, kk) for t in range(20) for kk in range(4)]

    def kread(n):
        t, kk = mf[n]
        if t == 16 and kk == 0:
            for k2 in range(4):
                V(a, "v_add_u32 v%d, 0x10000, v%d", [KA1 + k2], [KA1 + k2], KA1 + k2, KA1 + k2)
        a.ds_read("ds_read_b128", F1 + 4 * (n % RING1), 4, KA1 + kk, (t % 16) * 4096, ("K1", n))

    def mx(tt):
        b = S1 + 4 * tt
        V(a, "v_max3_f32 v%d, v%d, v%d, v%d", [VM, b, b + 1], [VM], VM, VM, b, b + 1)
        V(a, "v_max3_f32 v%d, v%d, v%d, v%d", [VM, b + 2, b + 3], [VM], VM, VM, b + 2, b + 3)
    for n in range(RING1):
        kread(n)
    for n in range(80):
        t, kk = mf[n]
        a.wait_lds(("K1", n))
        a.mfma(False, S1 + 4 * t, F1 + 4 * (n % RING1), Q1 + 4 * kk, czero=(kk == 0))
        if n + RING1 < 80:
            kread(n + RING1)
        if kk == 3 and t >= 2:
            mx(t - 2)
    mx(18); mx(19)
    for sw in ("v_permlane16_swap_b32", "v_permlane32_swap_b32"):
        V(a, "v_mov_b32 v%d, v%d", [VM], [VT0], VT0, VM)
        V(a, "%s v%d, v%d", [VM, VT0], [VM, VT0], sw, VM, VT0, perm=True)
        V(a, "v_max_f32 v%d, v%d, v%d", [VM, VT0], [VM], VM, VM, VT0)
    V(a, "v_mul_f32 v%d, 0x%08x, v%d", [VM], [VM], VM, NCBITS, VM)

    mf2 = [(p, d) for p in range(10) for d in range(8)]

    def vreads(n):
        p, d = mf2[n]
        if p == 8 and d == 0:
            for d2 in range(8):
                V(a, "v_add_u32 v%d, 0x10000, v%d", [VA1 + d2], [VA1 + d2], VA1 + d2, VA1 + d2)
        slot = n % RING1
        for u in range(2):
            aa = 2 * p + u
            a.ds_read("ds_read_b64_tr_b16", F1 + 4 * slot + 2 * u, 2, VA1 + d, (aa % 16) * 4096, ("V1", n))
    R2 = 7
    for n in range(R2):
        vreads(n)
    for op in sm_work(a, S1):
        op()
    for p in range(10):
        nxt = sm_work(a, S1 + 8 * (p + 1)) if p < 9 else []
        for d in range(8):
            n = 8 * p + d
            a.wait_lds(("V1", n))
            if not NOPV or p == 0:
                a.mfma(False, O1 + 4 * d, F1 + 4 * (n % RING1), S1 + 8 * p, czero=(p == 0))
            if n + R2 < 80:
                vreads(n + R2)
            lo = (28 * d) // 8
            hi = (28 * (d + 1)) // 8
            for op in nxt[lo:hi]:
                op()
    V(a, "v_add_f32 v%d, v%d, v%d", [VL, VL2], [VL], VL, VL, VL2)
    for sw in ("v_permlane16_swap_b32", "v_permlane32_swap_b32"):
        V(a, "v_mov_b32 v%d, v%d", [VL], [VT0], VT0, VL)
        V(a, "%s v%d, v%d", [VL, VT0], [VL, VT0], sw, VL, VT0, perm=True)
        V(a, "v_add_f32 v%d, v%d, v%d", [VL, VT0], [VL], VL, VL, VT0)
    V(a, "v_rcp_f32 v%d, v%d", [VL], [VL], VL, VL, trans=True)
    for i in range(32):
        V(a, "v_mul_f32 v%d, v%d, v%d", [O1 + i, VL], [O1 + i], O1 + i, O1 + i, VL)
    for i in range(16):
        V(a, "v_cvt_pk_bf16_f32 v%d, v%d, v%d", [O1 + 2 * i, O1 + 2 * i + 1], [O1 + i], O1 + i, O1 + 2 * i, O1 + 2 * i + 1)
    for e in range(4):
        x = O1 + 4 * e
        V(a, "v_permlane16_swap_b32 v%d, v%d", [x, x + 2], [x, x + 2], x, x + 2, perm=True)
        V(a, "v_permlane16_swap_b32 v%d, v%d", [x + 1, x + 3], [x + 1, x + 3], x + 1, x + 3, perm=True)
    for e in range(4):
        x = O1 + 4 * e
        a.vmem("buffer_store_dwordx4 v[%d:%d], v%d, s[%d:%d], 0 offen offset:%d" % (x, x + 3, VOFF1S, SO, SO + 3, 64 * e),
               "ST", reads=list(range(x, x + 4)) + [VOFF1S], store=True)


def build():
    a = Asm()
    a.raw("s_cmp_ge_u32 s2, 256")
    a.raw("s_cbranch_scc1 L_end")
    a.stamp(0)
    if STAMP:
        a.raw("s_memrealtime s[62:63]")
        a.raw("s_waitcnt lgkmcnt(0)")
    prologue(a)
    if PRIO:
        a.raw("s_cmp_ge_u32 s%d, 4" % SWAVE)
        a.raw("s_cbranch_scc1 L_noprio")
        a.raw("s_setprio %d" % PRIO)
        a.label("L_noprio")
    a.raw("s_cmp_ge_u32 s%d, 4" % SWAVE)
    a.raw("s_cbranch_scc1 L_bpre")
    q_from_lds(a)
    a.stamp(1)
    qk32(a, barriers=True)
    a.stamp(2)
    a.wait_vm("V")
    a.raw("s_barrier")
    a.stamp(3)
    a.fence()
    a.raw("s_branch L_common")
    a.label("L_bpre")
    a.vm_q = ["K%d" % n for n in range(10)]; a.lds_q = []
    a.fence()
    a.stamp(1)
    for t in range(10):
        a.wait_vm("K%d" % t)
        a.raw("s_barrier")
        if t == VAT:
            v_dma(a)
        if t == QAT:
            q_loads32(a)
    a.wait_vm("V")
    a.raw("s_barrier")
    if QAT >= 10:
        q_loads32(a)
    a.wait_vm("Q")
    a.stamp(2)
    qk32(a, barriers=False)
    a.stamp(3)
    a.fence()
    a.label("L_common")
    a.vm_q = []; a.lds_q = []

    def q1_prefetch():
        a.raw("s_cmp_ge_u32 s%d, 4" % SWAVE)
        a.raw("s_cbranch_scc1 L_noq1")
        q1_addr(a)
        for kk in range(4):
            a.vmem("buffer_load_dwordx4 v[%d:%d], v%d, s[%d:%d], 0 offen offset:%d" % (Q1 + 4 * kk, Q1 + 4 * kk + 3, VT2, SQ, SQ + 3, 64 * kk),
                   "Q1", reads=[VT2], writes=range(Q1 + 4 * kk, Q1 + 4 * kk + 4))
        a.label("L_noq1")
    smpv32(a, q1_prefetch)
    a.stamp(4)
    epilogue32(a)
    a.stamp(5)
    a.raw("s_cmp_ge_u32 s%d, 4" % SWAVE)
    a.raw("s_cbranch_scc1 L_fin")
    block16(a)
    a.label("L_fin")
    if STAMP:
        a.raw("s_waitcnt vmcnt(0)")
        a.stamp(7)
        a.raw("s_memrealtime s[58:59]")
        a.raw("s_waitcnt lgkmcnt(0)")
        a.stamp_store()
    a.label("L_end")
    a.raw("s_endpgm")
    return a


if __name__ == "__main__":
    a = build()
    args = [x for x in sys.argv[1:] if not x.startswith("--")]
    out = args[0] if args else "standalone__gqa_softmax__near_ridge.s"
    open(out, "w").write(a.text())
    print("instructions:", len(a.lines), "nops:", a.nops)
```

```python
import sys, math

HEADER = """; Kernarg layout for this problem (48 bytes, ptrs only, base s[0:1]):
;   offset   0: d_in[0] q  shape=(8, 32, 320, 128) dtype=bfloat16 strides=(2621440, 81920, 256, 2) contiguous=True
;   offset   8: d_in[1] k  shape=(8, 8, 320, 128) dtype=bfloat16 strides=(655360, 81920, 256, 2) contiguous=True
;   offset  16: d_in[2] v  shape=(8, 8, 320, 128) dtype=bfloat16 strides=(655360, 81920, 256, 2) contiguous=True
; @launch grid=(256,1,1) block=(512,1,1) lds=163840
.amdgcn_target "amdgcn-amd-amdhsa--gfx950"
.text
.globl standalone__gqa_softmax__near_ridge_kernel
.p2align 8
.type standalone__gqa_softmax__near_ridge_kernel,@function
standalone__gqa_softmax__near_ridge_kernel:
"""
FOOTER = """.section .rodata,"a"
.p2align 6
.amdhsa_kernel standalone__gqa_softmax__near_ridge_kernel
  .amdhsa_next_free_vgpr 256
  .amdhsa_next_free_sgpr 100
  .amdhsa_accum_offset 256
  .amdhsa_group_segment_fixed_size 0
  .amdhsa_kernarg_size 48
  .amdhsa_user_sgpr_count 2
  .amdhsa_user_sgpr_kernarg_segment_ptr 1
  .amdhsa_system_sgpr_workgroup_id_x 1
.end_amdhsa_kernel
"""

LDS_V = 81920
DBGSTAMP = "--dbgstamp" in sys.argv
STAMP = "--stamp" in sys.argv or DBGSTAMP
NOEXP = "--noexp" in sys.argv
NOVREAD = "--novread" in sys.argv
NOSM = "--nosm" in sys.argv
NOPV = "--nopv" in sys.argv


class Asm:
    def __init__(self):
        self.lines = []
        self.slot = 0
        self.valu_w = {}
        self.trans_w = {}
        self.mfma_w = {}
        self.mfma_c = {}
        self.store_r = {}
        self.sgpr_valu_w = {}
        self.lds_q = []
        self.vm_q = []
        self.nops = 0

    def raw(self, text, cost=1):
        self.lines.append("    " + text)
        self.slot += cost

    def label(self, name):
        self.lines.append(name + ":")

    def comment(self, t):
        self.lines.append("    ; " + t)

    def need(self, pslot, ws):
        have = self.slot - pslot - 1
        if have < ws:
            k = ws - have
            self.nops += k
            while k > 0:
                n = min(k, 16)
                self.raw("s_nop %d" % (n - 1), cost=n)
                k -= n

    def fence(self):
        self.raw("s_nop 15", cost=16)
        self.valu_w.clear(); self.trans_w.clear(); self.mfma_w.clear(); self.mfma_c.clear()
        self.store_r.clear(); self.sgpr_valu_w.clear()

    MF_RD = {4: 8, 8: 12}
    MF_OV = {4: 6, 8: 10}
    MF_WAR = {4: 3, 8: 7}

    def _chk_read_any(self, regs):
        for r in regs:
            if r in self.mfma_w:
                s, p, _ = self.mfma_w[r]
                self.need(s, self.MF_RD[p])

    def valu(self, text, reads=(), writes=(), trans=False, perm=False, sreads=()):
        self._chk_read_any(reads)
        for r in reads:
            if not trans and r in self.trans_w:
                self.need(self.trans_w[r], 1)
            if perm and r in self.valu_w:
                self.need(self.valu_w[r], 2)
        for r in writes:
            if r in self.mfma_w:
                s, p, _ = self.mfma_w[r]
                self.need(s, self.MF_RD[p])
            if r in self.mfma_c:
                s, p = self.mfma_c[r]
                self.need(s, self.MF_WAR[p])
            if r in self.store_r:
                self.need(self.store_r[r], 2)
        for s in sreads:
            if s in self.sgpr_valu_w:
                self.need(self.sgpr_valu_w[s], 2)
        cur = self.slot
        self.raw(text)
        for r in writes:
            self.valu_w[r] = cur
            self.mfma_w.pop(r, None)
            if trans:
                self.trans_w[r] = cur
            else:
                self.trans_w.pop(r, None)

    def readfirstlane(self, sreg, vreg):
        if vreg in self.valu_w:
            self.need(self.valu_w[vreg], 1)
        cur = self.slot
        self.raw("v_readfirstlane_b32 s%d, v%d" % (sreg, vreg))
        self.sgpr_valu_w[sreg] = cur

    def mfma(self, big, d, a, b, czero=False):
        n = 16 if big else 4
        passes = 8 if big else 4
        name = "v_mfma_f32_32x32x16_bf16" if big else "v_mfma_f32_16x16x32_bf16"
        areg = list(range(a, a + 4)); breg = list(range(b, b + 4)); dreg = list(range(d, d + n))
        for r in areg + breg:
            if r in self.valu_w:
                self.need(self.valu_w[r], 2)
            if r in self.mfma_w:
                s, p, _ = self.mfma_w[r]
                self.need(s, self.MF_RD[p])
        if not czero:
            for r in dreg:
                if r in self.valu_w:
                    self.need(self.valu_w[r], 2)
                if r in self.mfma_w:
                    s, p, db = self.mfma_w[r]
                    if not (db == d and p == passes):
                        self.need(s, self.MF_OV[p])
        else:
            for r in dreg:
                if r in self.mfma_w:
                    s, p, db = self.mfma_w[r]
                    self.need(s, self.MF_RD[p])
        cur = self.slot
        c = "0" if czero else "v[%d:%d]" % (d, d + n - 1)
        self.raw("%s v[%d:%d], v[%d:%d], v[%d:%d], %s" % (name, d, d + n - 1, a, a + 3, b, b + 3, c))
        for r in dreg:
            self.mfma_w[r] = (cur, passes, d)
            self.valu_w.pop(r, None); self.trans_w.pop(r, None)
            if not czero:
                self.mfma_c[r] = (cur, passes)

    def ds_read(self, op, dst, nregs, addr, offset, tag):
        if NOVREAD and "tr" in op:
            return
        self._chk_read_any([addr])
        for r in range(dst, dst + nregs):
            if r in self.mfma_w:
                s, p, _ = self.mfma_w[r]
                self.need(s, self.MF_RD[p])
        assert 0 <= offset < 65536
        self.raw("%s v[%d:%d], v%d offset:%d" % (op, dst, dst + nregs - 1, addr, offset))
        for r in range(dst, dst + nregs):
            self.valu_w.pop(r, None); self.trans_w.pop(r, None); self.mfma_w.pop(r, None)
        self.lds_q.append(tag)

    def wait_lds(self, tag):
        if NOVREAD and tag[0] in ("V", "V1"):
            return
        idx = max(i for i, t in enumerate(self.lds_q) if t == tag)
        n = len(self.lds_q) - 1 - idx
        assert n <= 15
        self.raw("s_waitcnt lgkmcnt(%d)" % n)
        self.lds_q = self.lds_q[idx + 1:]

    def vmem(self, text, tag, reads=(), writes=(), sreads=(), store=False):
        self._chk_read_any(reads)
        for r in writes:
            if r in self.mfma_w:
                s, p, _ = self.mfma_w[r]
                self.need(s, self.MF_RD[p])
        for s in sreads:
            if s in self.sgpr_valu_w:
                self.need(self.sgpr_valu_w[s], 5)
        cur = self.slot
        self.raw(text)
        for r in writes:
            self.valu_w.pop(r, None); self.trans_w.pop(r, None); self.mfma_w.pop(r, None)
        if store:
            for r in reads:
                self.store_r[r] = cur
        self.vm_q.append(tag)

    def wait_vm(self, tag):
        idx = max(i for i, t in enumerate(self.vm_q) if t == tag)
        n = len(self.vm_q) - 1 - idx
        assert n <= 63
        self.raw("s_waitcnt vmcnt(%d)" % n)
        self.vm_q = self.vm_q[idx + 1:]

    def stamp(self, i):
        if not STAMP:
            return
        self.raw("s_memtime s[%d:%d]" % (64 + 2 * i, 65 + 2 * i))
        self.raw("s_waitcnt lgkmcnt(0)")
        self.lds_q = []

    def stamp_store(self):
        if not STAMP:
            return
        if DBGSTAMP:
            self.raw("s_cmp_lg_u32 s2, 17")
            self.raw("s_cbranch_scc1 L_end")
            self.raw("s_and_b32 s12, s%d, 3" % SWAVE)
            self.raw("s_cmp_lg_u32 s12, 0")
            self.raw("s_cbranch_scc1 L_end")
            self.raw("s_load_dwordx2 s[4:5], s[0:1], 32")
            self.raw("s_waitcnt lgkmcnt(0)")
            self.raw("s_mov_b32 s6, 256")
            self.raw("s_mov_b32 s7, 0x00020000")
            self.raw("s_lshl_b32 s12, s%d, 3" % SWAVE)
            self.raw("s_sub_u32 s92, s92, s94")
            self.raw("s_nop 7", cost=8)
            for j, i in enumerate((11, 1, 2, 3, 4, 5, 7, 14)):
                if i != 14:
                    self.raw("s_sub_u32 s%d, s%d, s64" % (64 + 2 * i, 64 + 2 * i))
                self.raw("v_mov_b32 v1, s%d" % (64 + 2 * i))
                self.raw("v_mov_b32 v2, s12")
                self.raw("buffer_store_dword v1, v2, s[4:7], 0 offen offset:%d" % (4 * j))
                self.raw("s_nop 3", cost=4)
            return
        self.raw("s_load_dwordx2 s[4:5], s[0:1], 40")
        self.raw("s_waitcnt lgkmcnt(0)")
        self.raw("s_mov_b32 s6, 0x1000000")
        self.raw("s_mov_b32 s7, 0x00020000")
        self.raw("s_lshl_b32 s12, s2, 3")
        self.raw("s_add_u32 s12, s12, s%d" % SWAVE)
        self.raw("s_lshl_b32 s12, s12, 6")
        self.raw("s_nop 7", cost=8)
        for i in range(16):
            self.raw("v_mov_b32 v1, s%d" % (64 + 2 * i))
            self.raw("v_mov_b32 v2, s12")
            self.raw("buffer_store_dword v1, v2, s[4:7], 0 offen offset:%d" % (4 * i))
            self.raw("s_nop 3", cost=4)

    def text(self):
        return HEADER + "\n".join(self.lines) + "\n" + FOOTER


S0 = 0
O0 = 160
Q0 = 160
KF0 = 192
RING0 = 224
KA0 = 224
VA0 = 244
VM = 248
VL = 249
VOFF = 250
VLANE = 251
VT0 = 252
VT1 = 253
VT2 = 254
VL2 = 255
SQ, SK, SV, SO = 20, 24, 28, 32
SWAVE = 18
RING = 5
import struct
CBITS = struct.unpack("<I", struct.pack("<f", math.log2(math.e) / math.sqrt(128.0)))[0]
NCBITS = CBITS ^ 0x80000000


def opt(name, default):
    for x in sys.argv:
        if x.startswith("--%s=" % name):
            return int(x.split("=")[1])
    return default


PRIO = opt("prio", 0)
VAT = opt("vat", 9)
QAT = opt("qat", 9)
Q1AT = opt("q1at", 6)
T0, T1, T2, T3, T4, T5 = 0, 1, 2, 3, 4, 5
VDK, VDV, VDQ = 8, 9, 10
VQA = 16


def V(a, fmt, reads, writes, *args, **kw):
    a.valu(fmt % args, reads, writes, **kw)


def prologue(a):
    a.raw("s_load_dwordx4 s[4:7], s[0:1], 0")
    a.raw("s_load_dwordx4 s[8:11], s[0:1], 16")
    a.raw("s_and_b32 s12, s2, 7")
    a.raw("s_lshr_b32 s13, s2, 3")
    a.raw("s_lshr_b32 s14, s13, 2")
    a.raw("s_lshl_b32 s14, s14, 3")
    a.raw("s_add_u32 s14, s14, s12")
    a.raw("s_and_b32 s13, s13, 3")
    a.raw("s_lshl_b32 s15, s14, 2")
    a.raw("s_add_u32 s15, s15, s13")
    a.raw("s_mul_i32 s16, s14, 81920")
    a.raw("s_mul_i32 s17, s15, 81920")
    V(a, "v_lshrrev_b32 v%d, 6, v0", [0], [VT0], VT0)
    V(a, "v_and_b32 v%d, 63, v0", [0], [VLANE], VLANE)
    a.readfirstlane(SWAVE, VT0)
    L = VLANE
    V(a, "v_lshrrev_b32 v%d, 4, v%d", [L], [T0], T0, L)
    V(a, "v_and_b32 v%d, 15, v%d", [L], [T1], T1, L)
    V(a, "v_xor_b32 v%d, v%d, v%d", [T0, T1], [T2], T2, T0, T1)
    V(a, "v_lshlrev_b32 v%d, 4, v%d", [T2], [T2], T2, T2)
    V(a, "v_lshl_or_b32 v%d, v%d, 8, v%d", [T0, T2], [VDQ], VDQ, T0, T2)
    for i in range(1, 4):
        V(a, "v_xor_b32 v%d, %d, v%d", [VDQ], [VDQ + i], VDQ + i, i << 6, VDQ)
    a.raw("s_and_b32 s36, s%d, 3" % SWAVE)
    a.raw("s_lshr_b32 s37, s%d, 2" % SWAVE)
    a.raw("s_mul_i32 s38, s36, 80")
    a.raw("s_lshl_b32 s39, s37, 5")
    a.raw("s_add_u32 s38, s38, s39")
    a.raw("s_lshl_b32 s40, s%d, 10" % SWAVE)
    a.raw("s_and_b32 s42, s%d, 1" % SWAVE)
    a.raw("s_lshl_b32 s43, s36, 6")
    a.raw("s_lshl_b32 s45, s38, 8")
    a.raw("s_waitcnt lgkmcnt(0)")
    a.stamp(8)
    for (srd, lo, off) in ((SQ, 4, 17), (SK, 6, 16), (SV, 8, 16), (SO, 10, 17)):
        a.raw("s_add_u32 s%d, s%d, s%d" % (srd, lo, off))
        a.raw("s_addc_u32 s%d, s%d, 0" % (srd + 1, lo + 1))
        a.raw("s_mov_b32 s%d, 81920" % (srd + 2))
        a.raw("s_mov_b32 s%d, 0x00020000" % (srd + 3))
    a.raw("s_cmp_ge_u32 s%d, 4" % SWAVE)
    a.raw("s_cbranch_scc1 L_noqdma")
    for i in range(8):
        a.raw("s_add_u32 m0, s40, %d" % (i * 8192 + LDS_V))
        a.raw("s_add_u32 s41, s45, %d" % (i * 1024))
        a.vmem("buffer_load_dwordx4 v%d, s[%d:%d], s41 offen lds" % (VDQ + (i & 3), SQ, SQ + 3), "Q", reads=[VDQ + (i & 3)])
    a.label("L_noqdma")
    a.stamp(9)
    V(a, "v_xor_b32 v%d, s43, v%d", [VDQ], [VDK], VDK, VDQ)
    for n in range(10):
        a.raw("s_add_u32 m0, s40, %d" % (n * 8192))
        a.raw("s_add_u32 s41, s40, %d" % (n * 8192))
        a.vmem("buffer_load_dwordx4 v%d, s[%d:%d], s41 offen lds" % (VDK, SK, SK + 3), "K%d" % n, reads=[VDK])
        if n == 0:
            a.stamp(10)
    a.stamp(11)
    V(a, "v_lshlrev_b32 v%d, 1, v%d", [T0], [T3], T3, T0)
    V(a, "v_or_b32 v%d, s42, v%d", [T3], [T3], T3, T3)
    V(a, "v_lshlrev_b32 v%d, 1, v%d", [T3], [T3], T3, T3)
    V(a, "v_xor_b32 v%d, v%d, v%d", [T3, T1], [T3], T3, T3, T1)
    V(a, "v_lshlrev_b32 v%d, 4, v%d", [T3], [T3], T3, T3)
    V(a, "v_lshl_or_b32 v%d, v%d, 8, v%d", [T0, T3], [VDV], VDV, T0, T3)
    V(a, "v_and_b32 v%d, 31, v%d", [L], [T2], T2, L)
    V(a, "v_lshrrev_b32 v%d, 5, v%d", [L], [T3], T3, L)
    V(a, "v_add_u32 v%d, s38, v%d", [T2], [T4], T4, T2)
    V(a, "v_lshlrev_b32 v%d, 4, v%d", [T3], [T5], T5, T3)
    V(a, "v_lshl_or_b32 v%d, v%d, 8, v%d", [T4, T5], [VOFF], VOFF, T4, T5)
    V(a, "v_xor_b32 v%d, v%d, v%d", [T1, T3], [T4], T4, T1, T3)
    V(a, "v_lshlrev_b32 v%d, 4, v%d", [T4], [T4], T4, T4)
    V(a, "v_lshl_or_b32 v%d, v%d, 8, v%d", [T2, T4], [KA0], KA0, T2, T4)
    for kk in range(1, 8):
        V(a, "v_xor_b32 v%d, %d, v%d", [KA0], [KA0 + kk], KA0 + kk, kk << 5, KA0)
    V(a, "v_lshrrev_b32 v%d, 2, v%d", [T2], [T5], T5, T2)
    V(a, "v_lshl_or_b32 v%d, v%d, 13, v%d", [T5, T4], [T4], T4, T5, T4)
    V(a, "v_and_b32 v%d, 3, v%d", [T2], [T5], T5, T2)
    V(a, "v_lshl_or_b32 v%d, v%d, 8, v%d", [T5, T4], [T4], T4, T5, T4)
    a.raw("s_add_u32 s41, s40, %d" % LDS_V)
    V(a, "v_add_u32 v%d, s41, v%d", [T4], [VQA], VQA, T4)
    for kk in range(1, 8):
        V(a, "v_xor_b32 v%d, %d, v%d", [VQA], [VQA + kk], VQA + kk, kk << 5, VQA)
    V(a, "v_bfe_u32 v%d, v%d, 2, 2", [L], [T2], T2, L)
    V(a, "v_lshl_or_b32 v%d, v%d, 1, v%d", [T2, T3], [T4], T4, T2, T3)
    V(a, "v_bfe_u32 v%d, v%d, 4, 1", [L], [T5], T5, L)
    V(a, "v_xor_b32 v%d, v%d, v%d", [T4, T5], [T4], T4, T4, T5)
    V(a, "v_lshlrev_b32 v%d, 5, v%d", [T4], [T4], T4, T4)
    V(a, "v_lshl_add_u32 v%d, v%d, 2, v%d", [T3, T2], [T5], T5, T3, T2)
    V(a, "v_lshl_or_b32 v%d, v%d, 8, v%d", [T5, T4], [T4], T4, T5, T4)
    V(a, "v_and_b32 v%d, 3, v%d", [L], [T5], T5, L)
    V(a, "v_lshl_or_b32 v%d, v%d, 3, v%d", [T5, T4], [T4], T4, T5, T4)
    V(a, "v_add_u32 v%d, %d, v%d", [T4], [VA0], VA0, LDS_V, T4)
    for d in range(1, 4):
        V(a, "v_xor_b32 v%d, %d, v%d", [VA0], [VA0 + d], VA0 + d, d << 6, VA0)
    V(a, "v_mov_b32 v%d, 0xff800000", [], [VM], VM)
    V(a, "v_mov_b32 v%d, 0", [], [VL], VL)
    V(a, "v_mov_b32 v%d, 0", [], [VL2], VL2)
    V(a, "v_mov_b32 v%d, v%d", [VDV], [VT2], VT2, VDV)


def q_from_lds(a):
    a.wait_vm("Q")
    a.stamp(12)
    for kk in range(8):
        a.ds_read("ds_read_b128", Q0 + 4 * kk, 4, VQA + kk, 0, ("Q", kk))
    a.wait_lds(("Q", 7))


def v_dma(a):
    for n in range(10):
        a.raw("s_add_u32 m0, s40, %d" % (n * 8192 + LDS_V))
        a.raw("s_add_u32 s41, s40, %d" % (n * 8192))
        a.vmem("buffer_load_dwordx4 v%d, s[%d:%d], s41 offen lds" % (VT2, SV, SV + 3), "V", reads=[VT2])


def q_loads32(a):
    for kk in range(8):
        a.vmem("buffer_load_dwordx4 v[%d:%d], v%d, s[%d:%d], 0 offen offset:%d" % (Q0 + 4 * kk, Q0 + 4 * kk + 3, VOFF, SQ, SQ + 3, 32 * kk),
               "Q", reads=[VOFF], writes=range(Q0 + 4 * kk, Q0 + 4 * kk + 4))


def qk32(a, barriers):
    def kread(t, kk):
        if t == 8 and kk == 0:
            for k2 in range(8):
                V(a, "v_add_u32 v%d, 0x10000, v%d", [KA0 + k2], [KA0 + k2], KA0 + k2, KA0 + k2)
        a.ds_read("ds_read_b128", KF0 + 4 * kk, 4, KA0 + kk, (t % 8) * 8192, ("K", t, kk))

    def maxops(t):
        return [(S0 + 16 * t + 2 * i, S0 + 16 * t + 2 * i + 1) for i in range(8)]

    if barriers:
        a.wait_vm("K0")
        a.raw("s_barrier")
        a.stamp(13)
    for kk in range(8):
        kread(0, kk)
    for t in range(10):
        if barriers and t < 9:
            a.wait_vm("K%d" % (t + 1))
            a.raw("s_barrier")
            if t + 1 == VAT:
                v_dma(a)
        pend = maxops(t - 1) if t > 0 else []
        for kk in range(8):
            a.wait_lds(("K", t, kk))
            a.mfma(True, S0 + 16 * t, KF0 + 4 * kk, Q0 + 4 * kk, czero=(kk == 0))
            if t < 9:
                kread(t + 1, kk)
            if kk >= 4:
                for _ in range(2):
                    if pend:
                        r0, r1 = pend.pop(0)
                        V(a, "v_max3_f32 v%d, v%d, v%d, v%d", [VM, r0, r1], [VM], VM, VM, r0, r1)
    for (r0, r1) in maxops(9):
        V(a, "v_max3_f32 v%d, v%d, v%d, v%d", [VM, r0, r1], [VM], VM, VM, r0, r1)
    V(a, "v_mov_b32 v%d, v%d", [VM], [VT0], VT0, VM)
    V(a, "v_permlane32_swap_b32 v%d, v%d", [VM, VT0], [VM, VT0], VM, VT0, perm=True)
    V(a, "v_max_f32 v%d, v%d, v%d", [VM, VT0], [VM], VM, VM, VT0)
    V(a, "v_mul_f32 v%d, 0x%08x, v%d", [VM], [VM], VM, NCBITS, VM)


def sm_work(a, base):
    def f(i):
        return lambda: V(a, "v_fmamk_f32 v%d, v%d, 0x%08x, v%d", [base + i, VM], [base + i], base + i, base + i, CBITS, VM)
    def e(i):
        return lambda: V(a, ("v_mov_b32 v%d, v%d" if NOEXP else "v_exp_f32 v%d, v%d"), [base + i], [base + i], base + i, base + i, trans=True)
    def ad(i):
        acc = VL if (i & 1) == 0 else VL2
        return lambda: V(a, "v_add_f32 v%d, v%d, v%d", [acc, base + i], [acc], acc, acc, base + i)
    def c(i):
        return lambda: V(a, "v_cvt_pk_bf16_f32 v%d, v%d, v%d", [base + 2 * i, base + 2 * i + 1], [base + i], base + i, base + 2 * i, base + 2 * i + 1)
    order = [f(0), f(1), f(2), f(3), e(0), f(4), e(1), f(5), e(2), f(6), e(3), f(7), e(4), ad(0), e(5), ad(1), e(6), c(0),
             e(7), ad(2), ad(3), c(1), ad(4), ad(5), c(2), ad(6), ad(7), c(3)]
    if NOSM:
        return []
    return order


def smpv32(a, q1_prefetch):
    groups = [(t, m) for t in range(10) for m in range(2)]
    mf = [(g, d) for g in range(20) for d in range(4)]

    def vreads(n):
        g, d = mf[n]
        t, m = groups[g]
        if t == 8 and m == 0 and d == 0:
            for d2 in range(4):
                V(a, "v_add_u32 v%d, 0x10000, v%d", [VA0 + d2], [VA0 + d2], VA0 + d2, VA0 + d2)
        slot = n % RING
        for u in range(2):
            a.ds_read("ds_read_b64_tr_b16", RING0 + 4 * slot + 2 * u, 2, VA0 + d, (t % 8) * 8192 + m * 4096 + u * 2048, ("V", n))

    for n in range(RING):
        vreads(n)
    for op in sm_work(a, S0 + 0):
        op()
    for g in range(20):
        nxt = sm_work(a, S0 + 8 * (g + 1)) if g < 19 else []
        if g == Q1AT and q1_prefetch:
            q1_prefetch()
        for d in range(4):
            n = 4 * g + d
            a.wait_lds(("V", n))
            if not NOPV or g == 0:
                a.mfma(True, O0 + 16 * d, RING0 + 4 * (n % RING), S0 + 8 * g, czero=(g == 0))
            if n + RING < 80:
                vreads(n + RING)
            for op in nxt[7 * d: 7 * d + 7]:
                op()


def epilogue32(a):
    V(a, "v_add_f32 v%d, v%d, v%d", [VL, VL2], [VL], VL, VL, VL2)
    V(a, "v_mov_b32 v%d, v%d", [VL], [VT0], VT0, VL)
    V(a, "v_permlane32_swap_b32 v%d, v%d", [VL, VT0], [VL, VT0], VL, VT0, perm=True)
    V(a, "v_add_f32 v%d, v%d, v%d", [VL, VT0], [VL], VL, VL, VT0)
    V(a, "v_rcp_f32 v%d, v%d", [VL], [VL], VL, VL, trans=True)
    for d in range(4):
        b = O0 + 16 * d
        for i in range(16):
            V(a, "v_mul_f32 v%d, v%d, v%d", [b + i, VL], [b + i], b + i, b + i, VL)
        for i in range(8):
            V(a, "v_cvt_pk_bf16_f32 v%d, v%d, v%d", [b + 2 * i, b + 2 * i + 1], [b + i], b + i, b + 2 * i, b + 2 * i + 1)
        for hf in range(2):
            x = b + 4 * hf
            V(a, "v_permlane32_swap_b32 v%d, v%d", [x, x + 2], [x, x + 2], x, x + 2, perm=True)
            V(a, "v_permlane32_swap_b32 v%d, v%d", [x + 1, x + 3], [x + 1, x + 3], x + 1, x + 3, perm=True)
        for hf in range(2):
            x = b + 4 * hf
            a.vmem("buffer_store_dwordx4 v[%d:%d], v%d, s[%d:%d], 0 offen offset:%d" % (x, x + 3, VOFF, SO, SO + 3, 64 * d + 32 * hf),
                   "ST", reads=list(range(x, x + 4)) + [VOFF], store=True)


Q1 = 0
S1 = 16
O1 = 96
F1 = 128
KA1 = 224
VA1 = 228
VOFF1S = 236
U0, U1, U2, U3 = 237, 238, 239, 240
RING1 = 8


def q1_addr(a):
    L = VLANE
    a.raw("s_add_u32 s44, s38, 64")
    V(a, "v_and_b32 v%d, 15, v%d", [L], [VT0], VT0, L)
    V(a, "v_add_u32 v%d, s44, v%d", [VT0], [VT0], VT0, VT0)
    V(a, "v_lshrrev_b32 v%d, 4, v%d", [L], [VT1], VT1, L)
    V(a, "v_lshlrev_b32 v%d, 4, v%d", [VT1], [VT1], VT1, VT1)
    V(a, "v_lshl_add_u32 v%d, v%d, 8, v%d", [VT0, VT1], [VT2], VT2, VT0, VT1)


def block16(a):
    L = VLANE
    V(a, "v_and_b32 v%d, 15, v%d", [L], [U0], U0, L)
    V(a, "v_lshrrev_b32 v%d, 4, v%d", [L], [U1], U1, L)
    V(a, "v_xor_b32 v%d, v%d, v%d", [U0, U1], [U2], U2, U0, U1)
    V(a, "v_lshlrev_b32 v%d, 4, v%d", [U2], [U2], U2, U2)
    V(a, "v_lshl_or_b32 v%d, v%d, 8, v%d", [U0, U2], [KA1], KA1, U0, U2)
    for kk in range(1, 4):
        V(a, "v_xor_b32 v%d, %d, v%d", [KA1], [KA1 + kk], KA1 + kk, kk << 6, KA1)
    V(a, "v_bfe_u32 v%d, v%d, 2, 2", [L], [U2], U2, L)
    V(a, "v_and_b32 v%d, 1, v%d", [U1], [U3], U3, U1)
    V(a, "v_lshl_or_b32 v%d, v%d, 1, v%d", [U2, U3], [U3], U3, U2, U3)
    V(a, "v_lshlrev_b32 v%d, 5, v%d", [U3], [U3], U3, U3)
    V(a, "v_lshl_add_u32 v%d, v%d, 2, v%d", [U1, U2], [U2], U2, U1, U2)
    V(a, "v_lshl_or_b32 v%d, v%d, 8, v%d", [U2, U3], [U3], U3, U2, U3)
    V(a, "v_and_b32 v%d, 3, v%d", [L], [U2], U2, L)
    V(a, "v_lshl_or_b32 v%d, v%d, 3, v%d", [U2, U3], [U3], U3, U2, U3)
    V(a, "v_add_u32 v%d, %d, v%d", [U3], [VA1], VA1, LDS_V, U3)
    for d in range(1, 8):
        V(a, "v_xor_b32 v%d, %d, v%d", [VA1], [VA1 + d], VA1 + d, d << 5, VA1)
    V(a, "v_add_u32 v%d, s44, v%d", [U0], [U0], U0, U0)
    V(a, "v_and_b32 v%d, 1, v%d", [U1], [U2], U2, U1)
    V(a, "v_lshlrev_b32 v%d, 5, v%d", [U2], [U2], U2, U2)
    V(a, "v_lshrrev_b32 v%d, 1, v%d", [U1], [U3], U3, U1)
    V(a, "v_lshl_or_b32 v%d, v%d, 4, v%d", [U3, U2], [U2], U2, U3, U2)
    V(a, "v_lshl_add_u32 v%d, v%d, 8, v%d", [U0, U2], [VOFF1S], VOFF1S, U0, U2)
    V(a, "v_mov_b32 v%d, 0xff800000", [], [VM], VM)
    V(a, "v_mov_b32 v%d, 0", [], [VL], VL)
    V(a, "v_mov_b32 v%d, 0", [], [VL2], VL2)
    a.wait_vm("Q1")

    mf = [(t, kk) for t in range(20) for kk in range(4)]

    def kread(n):
        t, kk = mf[n]
        if t == 16 and kk == 0:
            for k2 in range(4):
                V(a, "v_add_u32 v%d, 0x10000, v%d", [KA1 + k2], [KA1 + k2], KA1 + k2, KA1 + k2)
        a.ds_read("ds_read_b128", F1 + 4 * (n % RING1), 4, KA1 + kk, (t % 16) * 4096, ("K1", n))

    def mx(tt):
        b = S1 + 4 * tt
        V(a, "v_max3_f32 v%d, v%d, v%d, v%d", [VM, b, b + 1], [VM], VM, VM, b, b + 1)
        V(a, "v_max3_f32 v%d, v%d, v%d, v%d", [VM, b + 2, b + 3], [VM], VM, VM, b + 2, b + 3)
    for n in range(RING1):
        kread(n)
    for n in range(80):
        t, kk = mf[n]
        a.wait_lds(("K1", n))
        a.mfma(False, S1 + 4 * t, F1 + 4 * (n % RING1), Q1 + 4 * kk, czero=(kk == 0))
        if n + RING1 < 80:
            kread(n + RING1)
        if kk == 3 and t >= 2:
            mx(t - 2)
    mx(18); mx(19)
    for sw in ("v_permlane16_swap_b32", "v_permlane32_swap_b32"):
        V(a, "v_mov_b32 v%d, v%d", [VM], [VT0], VT0, VM)
        V(a, "%s v%d, v%d", [VM, VT0], [VM, VT0], sw, VM, VT0, perm=True)
        V(a, "v_max_f32 v%d, v%d, v%d", [VM, VT0], [VM], VM, VM, VT0)
    V(a, "v_mul_f32 v%d, 0x%08x, v%d", [VM], [VM], VM, NCBITS, VM)

    mf2 = [(p, d) for p in range(10) for d in range(8)]

    def vreads(n):
        p, d = mf2[n]
        if p == 8 and d == 0:
            for d2 in range(8):
                V(a, "v_add_u32 v%d, 0x10000, v%d", [VA1 + d2], [VA1 + d2], VA1 + d2, VA1 + d2)
        slot = n % RING1
        for u in range(2):
            aa = 2 * p + u
            a.ds_read("ds_read_b64_tr_b16", F1 + 4 * slot + 2 * u, 2, VA1 + d, (aa % 16) * 4096, ("V1", n))
    R2 = 7
    for n in range(R2):
        vreads(n)
    for op in sm_work(a, S1):
        op()
    for p in range(10):
        nxt = sm_work(a, S1 + 8 * (p + 1)) if p < 9 else []
        for d in range(8):
            n = 8 * p + d
            a.wait_lds(("V1", n))
            if not NOPV or p == 0:
                a.mfma(False, O1 + 4 * d, F1 + 4 * (n % RING1), S1 + 8 * p, czero=(p == 0))
            if n + R2 < 80:
                vreads(n + R2)
            lo = (28 * d) // 8
            hi = (28 * (d + 1)) // 8
            for op in nxt[lo:hi]:
                op()
    V(a, "v_add_f32 v%d, v%d, v%d", [VL, VL2], [VL], VL, VL, VL2)
    for sw in ("v_permlane16_swap_b32", "v_permlane32_swap_b32"):
        V(a, "v_mov_b32 v%d, v%d", [VL], [VT0], VT0, VL)
        V(a, "%s v%d, v%d", [VL, VT0], [VL, VT0], sw, VL, VT0, perm=True)
        V(a, "v_add_f32 v%d, v%d, v%d", [VL, VT0], [VL], VL, VL, VT0)
    V(a, "v_rcp_f32 v%d, v%d", [VL], [VL], VL, VL, trans=True)
    for i in range(32):
        V(a, "v_mul_f32 v%d, v%d, v%d", [O1 + i, VL], [O1 + i], O1 + i, O1 + i, VL)
    for i in range(16):
        V(a, "v_cvt_pk_bf16_f32 v%d, v%d, v%d", [O1 + 2 * i, O1 + 2 * i + 1], [O1 + i], O1 + i, O1 + 2 * i, O1 + 2 * i + 1)
    for e in range(4):
        x = O1 + 4 * e
        V(a, "v_permlane16_swap_b32 v%d, v%d", [x, x + 2], [x, x + 2], x, x + 2, perm=True)
        V(a, "v_permlane16_swap_b32 v%d, v%d", [x + 1, x + 3], [x + 1, x + 3], x + 1, x + 3, perm=True)
    for e in range(4):
        x = O1 + 4 * e
        a.vmem("buffer_store_dwordx4 v[%d:%d], v%d, s[%d:%d], 0 offen offset:%d" % (x, x + 3, VOFF1S, SO, SO + 3, 64 * e),
               "ST", reads=list(range(x, x + 4)) + [VOFF1S], store=True)


def build():
    a = Asm()
    a.raw("s_cmp_ge_u32 s2, 256")
    a.raw("s_cbranch_scc1 L_end")
    if STAMP:
        for i in range(64, 96):
            a.raw("s_mov_b32 s%d, 0" % i)
    a.stamp(0)
    if STAMP:
        a.raw("s_memrealtime s[94:95]")
        a.raw("s_waitcnt lgkmcnt(0)")
    prologue(a)
    if PRIO:
        a.raw("s_cmp_ge_u32 s%d, 4" % SWAVE)
        a.raw("s_cbranch_scc1 L_noprio")
        a.raw("s_setprio %d" % PRIO)
        a.label("L_noprio")
    a.raw("s_cmp_ge_u32 s%d, 4" % SWAVE)
    a.raw("s_cbranch_scc1 L_bpre")
    q_from_lds(a)
    a.stamp(1)
    qk32(a, barriers=True)
    a.stamp(2)
    a.wait_vm("V")
    a.raw("s_barrier")
    a.stamp(3)
    a.fence()
    a.raw("s_branch L_common")
    a.label("L_bpre")
    a.vm_q = ["K%d" % n for n in range(10)]; a.lds_q = []
    a.fence()
    a.stamp(1)
    for t in range(10):
        a.wait_vm("K%d" % t)
        a.raw("s_barrier")
        if t == VAT:
            v_dma(a)
        if t == QAT:
            q_loads32(a)
    a.wait_vm("V")
    a.raw("s_barrier")
    if QAT >= 10:
        q_loads32(a)
    a.wait_vm("Q")
    a.stamp(2)
    qk32(a, barriers=False)
    a.stamp(3)
    a.fence()
    a.label("L_common")
    a.vm_q = []; a.lds_q = []

    def q1_prefetch():
        a.raw("s_cmp_ge_u32 s%d, 4" % SWAVE)
        a.raw("s_cbranch_scc1 L_noq1")
        q1_addr(a)
        for kk in range(4):
            a.vmem("buffer_load_dwordx4 v[%d:%d], v%d, s[%d:%d], 0 offen offset:%d" % (Q1 + 4 * kk, Q1 + 4 * kk + 3, VT2, SQ, SQ + 3, 64 * kk),
                   "Q1", reads=[VT2], writes=range(Q1 + 4 * kk, Q1 + 4 * kk + 4))
        a.label("L_noq1")
    smpv32(a, q1_prefetch)
    a.stamp(4)
    epilogue32(a)
    a.stamp(5)
    a.raw("s_cmp_ge_u32 s%d, 4" % SWAVE)
    a.raw("s_cbranch_scc1 L_fin")
    block16(a)
    a.label("L_fin")
    if STAMP:
        a.raw("s_waitcnt vmcnt(0)")
        a.stamp(7)
        a.raw("s_memrealtime s[92:93]")
        a.raw("s_waitcnt lgkmcnt(0)")
        a.stamp_store()
    a.label("L_end")
    a.raw("s_endpgm")
    return a


if __name__ == "__main__":
    a = build()
    args = [x for x in sys.argv[1:] if not x.startswith("--")]
    out = args[0] if args else "standalone__gqa_softmax__near_ridge.s"
    open(out, "w").write(a.text())
    print("instructions:", len(a.lines), "nops:", a.nops)
```

```python
import sys, math

HEADER = """; Kernarg layout for this problem (48 bytes, ptrs only, base s[0:1]):
;   offset   0: d_in[0] q  shape=(8, 32, 320, 128) dtype=bfloat16 strides=(2621440, 81920, 256, 2) contiguous=True
;   offset   8: d_in[1] k  shape=(8, 8, 320, 128) dtype=bfloat16 strides=(655360, 81920, 256, 2) contiguous=True
;   offset  16: d_in[2] v  shape=(8, 8, 320, 128) dtype=bfloat16 strides=(655360, 81920, 256, 2) contiguous=True
; @launch grid=(256,1,1) block=(512,1,1) lds=163840
.amdgcn_target "amdgcn-amd-amdhsa--gfx950"
.text
.globl standalone__gqa_softmax__near_ridge_kernel
.p2align 8
.type standalone__gqa_softmax__near_ridge_kernel,@function
standalone__gqa_softmax__near_ridge_kernel:
"""
FOOTER = """.section .rodata,"a"
.p2align 6
.amdhsa_kernel standalone__gqa_softmax__near_ridge_kernel
  .amdhsa_next_free_vgpr 256
  .amdhsa_next_free_sgpr 100
  .amdhsa_accum_offset 256
  .amdhsa_group_segment_fixed_size 0
  .amdhsa_kernarg_size 48
  .amdhsa_user_sgpr_count 2
  .amdhsa_user_sgpr_kernarg_segment_ptr 1
  .amdhsa_system_sgpr_workgroup_id_x 1
.end_amdhsa_kernel
"""

LDS_V = 81920
DBGSTAMP = "--dbgstamp" in sys.argv
STAMP = "--stamp" in sys.argv or DBGSTAMP
NOEXP = "--noexp" in sys.argv
NOVREAD = "--novread" in sys.argv
NOSM = "--nosm" in sys.argv
NOPV = "--nopv" in sys.argv


class Asm:
    def __init__(self):
        self.lines = []
        self.slot = 0
        self.valu_w = {}
        self.trans_w = {}
        self.mfma_w = {}
        self.mfma_c = {}
        self.store_r = {}
        self.sgpr_valu_w = {}
        self.lds_q = []
        self.vm_q = []
        self.nops = 0

    def raw(self, text, cost=1):
        self.lines.append("    " + text)
        self.slot += cost

    def label(self, name):
        self.lines.append(name + ":")

    def comment(self, t):
        self.lines.append("    ; " + t)

    def need(self, pslot, ws):
        have = self.slot - pslot - 1
        if have < ws:
            k = ws - have
            self.nops += k
            while k > 0:
                n = min(k, 16)
                self.raw("s_nop %d" % (n - 1), cost=n)
                k -= n

    def fence(self):
        self.raw("s_nop 15", cost=16)
        self.valu_w.clear(); self.trans_w.clear(); self.mfma_w.clear(); self.mfma_c.clear()
        self.store_r.clear(); self.sgpr_valu_w.clear()

    MF_RD = {4: 8, 8: 12}
    MF_OV = {4: 6, 8: 10}
    MF_WAR = {4: 3, 8: 7}

    def _chk_read_any(self, regs):
        for r in regs:
            if r in self.mfma_w:
                s, p, _ = self.mfma_w[r]
                self.need(s, self.MF_RD[p])

    def valu(self, text, reads=(), writes=(), trans=False, perm=False, sreads=()):
        self._chk_read_any(reads)
        for r in reads:
            if not trans and r in self.trans_w:
                self.need(self.trans_w[r], 1)
            if perm and r in self.valu_w:
                self.need(self.valu_w[r], 2)
        for r in writes:
            if r in self.mfma_w:
                s, p, _ = self.mfma_w[r]
                self.need(s, self.MF_RD[p])
            if r in self.mfma_c:
                s, p = self.mfma_c[r]
                self.need(s, self.MF_WAR[p])
            if r in self.store_r:
                self.need(self.store_r[r], 2)
        for s in sreads:
            if s in self.sgpr_valu_w:
                self.need(self.sgpr_valu_w[s], 2)
        cur = self.slot
        self.raw(text)
        for r in writes:
            self.valu_w[r] = cur
            self.mfma_w.pop(r, None)
            if trans:
                self.trans_w[r] = cur
            else:
                self.trans_w.pop(r, None)

    def readfirstlane(self, sreg, vreg):
        if vreg in self.valu_w:
            self.need(self.valu_w[vreg], 1)
        cur = self.slot
        self.raw("v_readfirstlane_b32 s%d, v%d" % (sreg, vreg))
        self.sgpr_valu_w[sreg] = cur

    def mfma(self, big, d, a, b, czero=False):
        n = 16 if big else 4
        passes = 8 if big else 4
        name = "v_mfma_f32_32x32x16_bf16" if big else "v_mfma_f32_16x16x32_bf16"
        areg = list(range(a, a + 4)); breg = list(range(b, b + 4)); dreg = list(range(d, d + n))
        for r in areg + breg:
            if r in self.valu_w:
                self.need(self.valu_w[r], 2)
            if r in self.mfma_w:
                s, p, _ = self.mfma_w[r]
                self.need(s, self.MF_RD[p])
        if not czero:
            for r in dreg:
                if r in self.valu_w:
                    self.need(self.valu_w[r], 2)
                if r in self.mfma_w:
                    s, p, db = self.mfma_w[r]
                    if not (db == d and p == passes):
                        self.need(s, self.MF_OV[p])
        else:
            for r in dreg:
                if r in self.mfma_w:
                    s, p, db = self.mfma_w[r]
                    self.need(s, self.MF_RD[p])
        cur = self.slot
        c = "0" if czero else "v[%d:%d]" % (d, d + n - 1)
        self.raw("%s v[%d:%d], v[%d:%d], v[%d:%d], %s" % (name, d, d + n - 1, a, a + 3, b, b + 3, c))
        for r in dreg:
            self.mfma_w[r] = (cur, passes, d)
            self.valu_w.pop(r, None); self.trans_w.pop(r, None)
            if not czero:
                self.mfma_c[r] = (cur, passes)

    def ds_read(self, op, dst, nregs, addr, offset, tag):
        if NOVREAD and "tr" in op:
            return
        self._chk_read_any([addr])
        for r in range(dst, dst + nregs):
            if r in self.mfma_w:
                s, p, _ = self.mfma_w[r]
                self.need(s, self.MF_RD[p])
        assert 0 <= offset < 65536
        self.raw("%s v[%d:%d], v%d offset:%d" % (op, dst, dst + nregs - 1, addr, offset))
        for r in range(dst, dst + nregs):
            self.valu_w.pop(r, None); self.trans_w.pop(r, None); self.mfma_w.pop(r, None)
        self.lds_q.append(tag)

    def wait_lds(self, tag):
        if NOVREAD and tag[0] in ("V", "V1"):
            return
        idx = max(i for i, t in enumerate(self.lds_q) if t == tag)
        n = len(self.lds_q) - 1 - idx
        assert n <= 15
        self.raw("s_waitcnt lgkmcnt(%d)" % n)
        self.lds_q = self.lds_q[idx + 1:]

    def vmem(self, text, tag, reads=(), writes=(), sreads=(), store=False):
        self._chk_read_any(reads)
        for r in writes:
            if r in self.mfma_w:
                s, p, _ = self.mfma_w[r]
                self.need(s, self.MF_RD[p])
        for s in sreads:
            if s in self.sgpr_valu_w:
                self.need(self.sgpr_valu_w[s], 5)
        cur = self.slot
        self.raw(text)
        for r in writes:
            self.valu_w.pop(r, None); self.trans_w.pop(r, None); self.mfma_w.pop(r, None)
        if store:
            for r in reads:
                self.store_r[r] = cur
        self.vm_q.append(tag)

    def wait_vm(self, tag):
        idx = max(i for i, t in enumerate(self.vm_q) if t == tag)
        n = len(self.vm_q) - 1 - idx
        assert n <= 63
        self.raw("s_waitcnt vmcnt(%d)" % n)
        self.vm_q = self.vm_q[idx + 1:]

    def stamp(self, i):
        if not STAMP:
            return
        self.raw("s_memtime s[%d:%d]" % (64 + 2 * i, 65 + 2 * i))
        self.raw("s_waitcnt lgkmcnt(0)")
        self.lds_q = []

    def stamp_store(self):
        if not STAMP:
            return
        if DBGSTAMP:
            self.raw("s_cmp_lg_u32 s2, 17")
            self.raw("s_cbranch_scc1 L_end")
            self.raw("s_and_b32 s12, s%d, 3" % SWAVE)
            self.raw("s_cmp_lg_u32 s12, 0")
            self.raw("s_cbranch_scc1 L_end")
            self.raw("s_load_dwordx2 s[4:5], s[0:1], 32")
            self.raw("s_waitcnt lgkmcnt(0)")
            self.raw("s_mov_b32 s6, 256")
            self.raw("s_mov_b32 s7, 0x00020000")
            self.raw("s_lshl_b32 s12, s%d, 3" % SWAVE)
            self.raw("s_sub_u32 s92, s92, s94")
            self.raw("s_nop 7", cost=8)
            for j, i in enumerate((11, 1, 2, 3, 4, 5, 7, 14)):
                if i != 14:
                    self.raw("s_sub_u32 s%d, s%d, s64" % (64 + 2 * i, 64 + 2 * i))
                self.raw("v_mov_b32 v1, s%d" % (64 + 2 * i))
                self.raw("v_mov_b32 v2, s12")
                self.raw("buffer_store_dword v1, v2, s[4:7], 0 offen offset:%d" % (4 * j))
                self.raw("s_nop 3", cost=4)
            return
        self.raw("s_load_dwordx2 s[4:5], s[0:1], 40")
        self.raw("s_waitcnt lgkmcnt(0)")
        self.raw("s_mov_b32 s6, 0x1000000")
        self.raw("s_mov_b32 s7, 0x00020000")
        self.raw("s_lshl_b32 s12, s2, 3")
        self.raw("s_add_u32 s12, s12, s%d" % SWAVE)
        self.raw("s_lshl_b32 s12, s12, 6")
        self.raw("s_nop 7", cost=8)
        for i in range(16):
            self.raw("v_mov_b32 v1, s%d" % (64 + 2 * i))
            self.raw("v_mov_b32 v2, s12")
            self.raw("buffer_store_dword v1, v2, s[4:7], 0 offen offset:%d" % (4 * i))
            self.raw("s_nop 3", cost=4)

    def text(self):
        return HEADER + "\n".join(self.lines) + "\n" + FOOTER


S0 = 0
O0 = 160
Q0 = 160
KF0 = 192
RING0 = 224
KA0 = 224
VA0 = 244
VM = 248
VL = 249
VOFF = 250
VLANE = 251
VT0 = 252
VT1 = 253
VT2 = 254
VL2 = 255
SQ, SK, SV, SO = 20, 24, 28, 32
SWAVE = 18
RING = 5
import struct
CBITS = struct.unpack("<I", struct.pack("<f", math.log2(math.e) / math.sqrt(128.0)))[0]
NCBITS = CBITS ^ 0x80000000


def opt(name, default):
    for x in sys.argv:
        if x.startswith("--%s=" % name):
            return int(x.split("=")[1])
    return default


PRIO = opt("prio", 0)
VAT = opt("vat", 9)
QAT = opt("qat", 9)
Q1AT = opt("q1at", 6)
VS = opt("vs", 5)
VPRE = opt("vpre", 4)
PF = opt("pf", 1)
STPOL = {0: "", 1: " nt", 2: " sc1", 3: " sc0 sc1", 4: " sc1 nt", 5: " sc0 sc1 nt"}[opt("stpol", 0)]
T0, T1, T2, T3, T4, T5 = 0, 1, 2, 3, 4, 5
VDK, VDV, VDQ = 8, 9, 10
VQA = 16


def V(a, fmt, reads, writes, *args, **kw):
    a.valu(fmt % args, reads, writes, **kw)


def prologue(a):
    a.raw("s_load_dwordx4 s[4:7], s[0:1], 0")
    a.raw("s_load_dwordx4 s[8:11], s[0:1], 16")
    if PF:
        a.raw("s_getpc_b64 s[46:47]")
        a.label("L_pc")
        V(a, "v_lshlrev_b32 v%d, 7, v0", [0], [VT0], VT0)
        V(a, "v_subrev_u32 v%d, 0x8000, v%d", [VT0], [VT0], VT0, VT0)
        V(a, "v_min_u32 v%d, L_end-L_pc, v%d", [VT0], [VT0], VT0, VT0)
        a.vmem("global_load_dword v159, v%d, s[46:47]" % VT0, "PF", reads=[VT0], writes=[159])
    a.raw("s_and_b32 s12, s2, 7")
    a.raw("s_lshr_b32 s13, s2, 3")
    a.raw("s_lshr_b32 s14, s13, 2")
    a.raw("s_lshl_b32 s14, s14, 3")
    a.raw("s_add_u32 s14, s14, s12")
    a.raw("s_and_b32 s13, s13, 3")
    a.raw("s_lshl_b32 s15, s14, 2")
    a.raw("s_add_u32 s15, s15, s13")
    a.raw("s_mul_i32 s16, s14, 81920")
    a.raw("s_mul_i32 s17, s15, 81920")
    V(a, "v_lshrrev_b32 v%d, 6, v0", [0], [VT0], VT0)
    V(a, "v_and_b32 v%d, 63, v0", [0], [VLANE], VLANE)
    a.readfirstlane(SWAVE, VT0)
    L = VLANE
    V(a, "v_lshrrev_b32 v%d, 4, v%d", [L], [T0], T0, L)
    V(a, "v_and_b32 v%d, 15, v%d", [L], [T1], T1, L)
    V(a, "v_xor_b32 v%d, v%d, v%d", [T0, T1], [T2], T2, T0, T1)
    V(a, "v_lshlrev_b32 v%d, 4, v%d", [T2], [T2], T2, T2)
    V(a, "v_lshl_or_b32 v%d, v%d, 8, v%d", [T0, T2], [VDQ], VDQ, T0, T2)
    for i in range(1, 4):
        V(a, "v_xor_b32 v%d, %d, v%d", [VDQ], [VDQ + i], VDQ + i, i << 6, VDQ)
    a.raw("s_and_b32 s36, s%d, 3" % SWAVE)
    a.raw("s_lshr_b32 s37, s%d, 2" % SWAVE)
    a.raw("s_mul_i32 s38, s36, 80")
    a.raw("s_lshl_b32 s39, s37, 5")
    a.raw("s_add_u32 s38, s38, s39")
    a.raw("s_lshl_b32 s40, s%d, 10" % SWAVE)
    a.raw("s_and_b32 s42, s%d, 1" % SWAVE)
    a.raw("s_lshl_b32 s43, s36, 6")
    a.raw("s_lshl_b32 s45, s38, 8")
    a.raw("s_waitcnt lgkmcnt(0)")
    a.stamp(8)
    for (srd, lo, off) in ((SQ, 4, 17), (SK, 6, 16), (SV, 8, 16), (SO, 10, 17)):
        a.raw("s_add_u32 s%d, s%d, s%d" % (srd, lo, off))
        a.raw("s_addc_u32 s%d, s%d, 0" % (srd + 1, lo + 1))
        a.raw("s_mov_b32 s%d, 81920" % (srd + 2))
        a.raw("s_mov_b32 s%d, 0x00020000" % (srd + 3))
    a.raw("s_cmp_ge_u32 s%d, 4" % SWAVE)
    a.raw("s_cbranch_scc1 L_noqdma")
    for i in range(8):
        a.raw("s_add_u32 m0, s40, %d" % (i * 8192 + LDS_V))
        a.raw("s_add_u32 s41, s45, %d" % (i * 1024))
        a.vmem("buffer_load_dwordx4 v%d, s[%d:%d], s41 offen lds" % (VDQ + (i & 3), SQ, SQ + 3), "Q", reads=[VDQ + (i & 3)])
    a.label("L_noqdma")
    a.stamp(9)
    V(a, "v_xor_b32 v%d, s43, v%d", [VDQ], [VDK], VDK, VDQ)
    for n in range(10):
        a.raw("s_add_u32 m0, s40, %d" % (n * 8192))
        a.raw("s_add_u32 s41, s40, %d" % (n * 8192))
        a.vmem("buffer_load_dwordx4 v%d, s[%d:%d], s41 offen lds" % (VDK, SK, SK + 3), "K%d" % n, reads=[VDK])
        if n == 0:
            a.stamp(10)
    a.stamp(11)
    V(a, "v_lshlrev_b32 v%d, 1, v%d", [T0], [T3], T3, T0)
    V(a, "v_or_b32 v%d, s42, v%d", [T3], [T3], T3, T3)
    V(a, "v_lshlrev_b32 v%d, 1, v%d", [T3], [T3], T3, T3)
    V(a, "v_xor_b32 v%d, v%d, v%d", [T3, T1], [T3], T3, T3, T1)
    V(a, "v_lshlrev_b32 v%d, 4, v%d", [T3], [T3], T3, T3)
    V(a, "v_lshl_or_b32 v%d, v%d, 8, v%d", [T0, T3], [VDV], VDV, T0, T3)
    V(a, "v_and_b32 v%d, 31, v%d", [L], [T2], T2, L)
    V(a, "v_lshrrev_b32 v%d, 5, v%d", [L], [T3], T3, L)
    V(a, "v_add_u32 v%d, s38, v%d", [T2], [T4], T4, T2)
    V(a, "v_lshlrev_b32 v%d, 4, v%d", [T3], [T5], T5, T3)
    V(a, "v_lshl_or_b32 v%d, v%d, 8, v%d", [T4, T5], [VOFF], VOFF, T4, T5)
    V(a, "v_xor_b32 v%d, v%d, v%d", [T1, T3], [T4], T4, T1, T3)
    V(a, "v_lshlrev_b32 v%d, 4, v%d", [T4], [T4], T4, T4)
    V(a, "v_lshl_or_b32 v%d, v%d, 8, v%d", [T2, T4], [KA0], KA0, T2, T4)
    for kk in range(1, 8):
        V(a, "v_xor_b32 v%d, %d, v%d", [KA0], [KA0 + kk], KA0 + kk, kk << 5, KA0)
    V(a, "v_lshrrev_b32 v%d, 2, v%d", [T2], [T5], T5, T2)
    V(a, "v_lshl_or_b32 v%d, v%d, 13, v%d", [T5, T4], [T4], T4, T5, T4)
    V(a, "v_and_b32 v%d, 3, v%d", [T2], [T5], T5, T2)
    V(a, "v_lshl_or_b32 v%d, v%d, 8, v%d", [T5, T4], [T4], T4, T5, T4)
    a.raw("s_add_u32 s41, s40, %d" % LDS_V)
    V(a, "v_add_u32 v%d, s41, v%d", [T4], [VQA], VQA, T4)
    for kk in range(1, 8):
        V(a, "v_xor_b32 v%d, %d, v%d", [VQA], [VQA + kk], VQA + kk, kk << 5, VQA)
    V(a, "v_bfe_u32 v%d, v%d, 2, 2", [L], [T2], T2, L)
    V(a, "v_lshl_or_b32 v%d, v%d, 1, v%d", [T2, T3], [T4], T4, T2, T3)
    V(a, "v_bfe_u32 v%d, v%d, 4, 1", [L], [T5], T5, L)
    V(a, "v_xor_b32 v%d, v%d, v%d", [T4, T5], [T4], T4, T4, T5)
    V(a, "v_lshlrev_b32 v%d, 5, v%d", [T4], [T4], T4, T4)
    V(a, "v_lshl_add_u32 v%d, v%d, 2, v%d", [T3, T2], [T5], T5, T3, T2)
    V(a, "v_lshl_or_b32 v%d, v%d, 8, v%d", [T5, T4], [T4], T4, T5, T4)
    V(a, "v_and_b32 v%d, 3, v%d", [L], [T5], T5, L)
    V(a, "v_lshl_or_b32 v%d, v%d, 3, v%d", [T5, T4], [T4], T4, T5, T4)
    V(a, "v_add_u32 v%d, %d, v%d", [T4], [VA0], VA0, LDS_V, T4)
    for d in range(1, 4):
        V(a, "v_xor_b32 v%d, %d, v%d", [VA0], [VA0 + d], VA0 + d, d << 6, VA0)
    V(a, "v_mov_b32 v%d, 0xff800000", [], [VM], VM)
    V(a, "v_mov_b32 v%d, 0", [], [VL], VL)
    V(a, "v_mov_b32 v%d, 0", [], [VL2], VL2)
    V(a, "v_mov_b32 v%d, v%d", [VDV], [VT2], VT2, VDV)


def q_from_lds(a):
    a.wait_vm("Q")
    a.stamp(12)
    for kk in range(8):
        a.ds_read("ds_read_b128", Q0 + 4 * kk, 4, VQA + kk, 0, ("Q", kk))
    a.wait_lds(("Q", 7))


def v_dma(a):
    for n in range(10):
        a.raw("s_add_u32 m0, s40, %d" % (n * 8192 + LDS_V))
        a.raw("s_add_u32 s41, s40, %d" % (n * 8192))
        a.vmem("buffer_load_dwordx4 v%d, s[%d:%d], s41 offen lds" % (VT2, SV, SV + 3), "V", reads=[VT2])


def q_loads32(a):
    for kk in range(8):
        a.vmem("buffer_load_dwordx4 v[%d:%d], v%d, s[%d:%d], 0 offen offset:%d" % (Q0 + 4 * kk, Q0 + 4 * kk + 3, VOFF, SQ, SQ + 3, 32 * kk),
               "Q", reads=[VOFF], writes=range(Q0 + 4 * kk, Q0 + 4 * kk + 4))


def qk32(a, barriers):
    def kread(t, kk):
        if t == 8 and kk == 0:
            for k2 in range(8):
                V(a, "v_add_u32 v%d, 0x10000, v%d", [KA0 + k2], [KA0 + k2], KA0 + k2, KA0 + k2)
        a.ds_read("ds_read_b128", KF0 + 4 * kk, 4, KA0 + kk, (t % 8) * 8192, ("K", t, kk))

    def maxops(t):
        return [(S0 + 16 * t + 2 * i, S0 + 16 * t + 2 * i + 1) for i in range(8)]

    if barriers:
        a.wait_vm("K0")
        a.raw("s_barrier")
        a.stamp(13)
    for kk in range(8):
        kread(0, kk)
    for t in range(10):
        if barriers and t < 9:
            a.wait_vm("K%d" % (t + 1))
            a.raw("s_barrier")
            if t + 1 == VAT:
                v_dma(a)
        pend = maxops(t - 1) if t > 0 else []
        for kk in range(8):
            a.wait_lds(("K", t, kk))
            a.mfma(True, S0 + 16 * t, KF0 + 4 * kk, Q0 + 4 * kk, czero=(kk == 0))
            if t < 9:
                kread(t + 1, kk)
            if kk >= 4:
                for _ in range(2):
                    if pend:
                        r0, r1 = pend.pop(0)
                        V(a, "v_max3_f32 v%d, v%d, v%d, v%d", [VM, r0, r1], [VM], VM, VM, r0, r1)
    for (r0, r1) in maxops(9):
        V(a, "v_max3_f32 v%d, v%d, v%d, v%d", [VM, r0, r1], [VM], VM, VM, r0, r1)
    V(a, "v_mov_b32 v%d, v%d", [VM], [VT0], VT0, VM)
    V(a, "v_permlane32_swap_b32 v%d, v%d", [VM, VT0], [VM, VT0], VM, VT0, perm=True)
    V(a, "v_max_f32 v%d, v%d, v%d", [VM, VT0], [VM], VM, VM, VT0)
    V(a, "v_mul_f32 v%d, 0x%08x, v%d", [VM], [VM], VM, NCBITS, VM)


def sm_work(a, base):
    def f(i):
        return lambda: V(a, "v_fmamk_f32 v%d, v%d, 0x%08x, v%d", [base + i, VM], [base + i], base + i, base + i, CBITS, VM)
    def e(i):
        return lambda: V(a, ("v_mov_b32 v%d, v%d" if NOEXP else "v_exp_f32 v%d, v%d"), [base + i], [base + i], base + i, base + i, trans=True)
    def ad(i):
        acc = VL if (i & 1) == 0 else VL2
        return lambda: V(a, "v_add_f32 v%d, v%d, v%d", [acc, base + i], [acc], acc, acc, base + i)
    def c(i):
        return lambda: V(a, "v_cvt_pk_bf16_f32 v%d, v%d, v%d", [base + 2 * i, base + 2 * i + 1], [base + i], base + i, base + 2 * i, base + 2 * i + 1)
    order = [f(0), f(1), f(2), f(3), e(0), f(4), e(1), f(5), e(2), f(6), e(3), f(7), e(4), ad(0), e(5), ad(1), e(6), c(0),
             e(7), ad(2), ad(3), c(1), ad(4), ad(5), c(2), ad(6), ad(7), c(3)]
    if NOSM:
        return []
    return order


def smpv32(a, q1_prefetch):
    groups = [(t, m) for t in range(10) for m in range(2)]
    mf = [(g, d) for g in range(20) for d in range(4)]

    def vreads(n):
        g, d = mf[n]
        t, m = groups[g]
        if t == 8 and m == 0 and d == 0:
            for d2 in range(4):
                V(a, "v_add_u32 v%d, 0x10000, v%d", [VA0 + d2], [VA0 + d2], VA0 + d2, VA0 + d2)
        slot = n % RING
        for u in range(2):
            a.ds_read("ds_read_b64_tr_b16", RING0 + 4 * slot + 2 * u, 2, VA0 + d, (t % 8) * 8192 + m * 4096 + u * 2048, ("V", n))

    for n in range(RING):
        vreads(n)
    for op in sm_work(a, S0 + 0):
        op()
    for g in range(20):
        nxt = sm_work(a, S0 + 8 * (g + 1)) if g < 19 else []
        if g == Q1AT and q1_prefetch:
            q1_prefetch()
        for d in range(4):
            n = 4 * g + d
            a.wait_lds(("V", n))
            if not NOPV or g == 0:
                a.mfma(True, O0 + 16 * d, RING0 + 4 * (n % RING), S0 + 8 * g, czero=(g == 0))
            if n + RING < 80:
                vreads(n + RING)
            for op in nxt[7 * d: 7 * d + 7]:
                op()


def epilogue32(a):
    V(a, "v_add_f32 v%d, v%d, v%d", [VL, VL2], [VL], VL, VL, VL2)
    V(a, "v_mov_b32 v%d, v%d", [VL], [VT0], VT0, VL)
    V(a, "v_permlane32_swap_b32 v%d, v%d", [VL, VT0], [VL, VT0], VL, VT0, perm=True)
    V(a, "v_add_f32 v%d, v%d, v%d", [VL, VT0], [VL], VL, VL, VT0)
    V(a, "v_rcp_f32 v%d, v%d", [VL], [VL], VL, VL, trans=True)
    for d in range(4):
        b = O0 + 16 * d
        for i in range(16):
            V(a, "v_mul_f32 v%d, v%d, v%d", [b + i, VL], [b + i], b + i, b + i, VL)
        for i in range(8):
            V(a, "v_cvt_pk_bf16_f32 v%d, v%d, v%d", [b + 2 * i, b + 2 * i + 1], [b + i], b + i, b + 2 * i, b + 2 * i + 1)
        for hf in range(2):
            x = b + 4 * hf
            V(a, "v_permlane32_swap_b32 v%d, v%d", [x, x + 2], [x, x + 2], x, x + 2, perm=True)
            V(a, "v_permlane32_swap_b32 v%d, v%d", [x + 1, x + 3], [x + 1, x + 3], x + 1, x + 3, perm=True)
        for hf in range(2):
            x = b + 4 * hf
            a.vmem(("buffer_store_dwordx4 v[%d:%d], v%d, s[%d:%d], 0 offen offset:%d" + STPOL) % (x, x + 3, VOFF, SO, SO + 3, 64 * d + 32 * hf),
                   "ST", reads=list(range(x, x + 4)) + [VOFF], store=True)


Q1 = 0
S1 = 16
O1 = 96
F1 = 128
KA1 = 224
VA1 = 228
VOFF1S = 236
U0, U1, U2, U3 = 237, 238, 239, 240
RING1 = 8


def q1_addr(a):
    L = VLANE
    a.raw("s_add_u32 s44, s38, 64")
    V(a, "v_and_b32 v%d, 15, v%d", [L], [VT0], VT0, L)
    V(a, "v_add_u32 v%d, s44, v%d", [VT0], [VT0], VT0, VT0)
    V(a, "v_lshrrev_b32 v%d, 4, v%d", [L], [VT1], VT1, L)
    V(a, "v_lshlrev_b32 v%d, 4, v%d", [VT1], [VT1], VT1, VT1)
    V(a, "v_lshl_add_u32 v%d, v%d, 8, v%d", [VT0, VT1], [VT2], VT2, VT0, VT1)


def block16(a):
    L = VLANE
    V(a, "v_and_b32 v%d, 15, v%d", [L], [U0], U0, L)
    V(a, "v_lshrrev_b32 v%d, 4, v%d", [L], [U1], U1, L)
    V(a, "v_xor_b32 v%d, v%d, v%d", [U0, U1], [U2], U2, U0, U1)
    V(a, "v_lshlrev_b32 v%d, 4, v%d", [U2], [U2], U2, U2)
    V(a, "v_lshl_or_b32 v%d, v%d, 8, v%d", [U0, U2], [KA1], KA1, U0, U2)
    for kk in range(1, 4):
        V(a, "v_xor_b32 v%d, %d, v%d", [KA1], [KA1 + kk], KA1 + kk, kk << 6, KA1)
    V(a, "v_bfe_u32 v%d, v%d, 2, 2", [L], [U2], U2, L)
    V(a, "v_and_b32 v%d, 1, v%d", [U1], [U3], U3, U1)
    V(a, "v_lshl_or_b32 v%d, v%d, 1, v%d", [U2, U3], [U3], U3, U2, U3)
    V(a, "v_lshlrev_b32 v%d, 5, v%d", [U3], [U3], U3, U3)
    V(a, "v_lshl_add_u32 v%d, v%d, 2, v%d", [U1, U2], [U2], U2, U1, U2)
    V(a, "v_lshl_or_b32 v%d, v%d, 8, v%d", [U2, U3], [U3], U3, U2, U3)
    V(a, "v_and_b32 v%d, 3, v%d", [L], [U2], U2, L)
    V(a, "v_lshl_or_b32 v%d, v%d, 3, v%d", [U2, U3], [U3], U3, U2, U3)
    V(a, "v_add_u32 v%d, %d, v%d", [U3], [VA1], VA1, LDS_V, U3)
    for d in range(1, 8):
        V(a, "v_xor_b32 v%d, %d, v%d", [VA1], [VA1 + d], VA1 + d, d << 5, VA1)
    V(a, "v_add_u32 v%d, s44, v%d", [U0], [U0], U0, U0)
    V(a, "v_and_b32 v%d, 1, v%d", [U1], [U2], U2, U1)
    V(a, "v_lshlrev_b32 v%d, 5, v%d", [U2], [U2], U2, U2)
    V(a, "v_lshrrev_b32 v%d, 1, v%d", [U1], [U3], U3, U1)
    V(a, "v_lshl_or_b32 v%d, v%d, 4, v%d", [U3, U2], [U2], U2, U3, U2)
    V(a, "v_lshl_add_u32 v%d, v%d, 8, v%d", [U0, U2], [VOFF1S], VOFF1S, U0, U2)
    V(a, "v_mov_b32 v%d, 0xff800000", [], [VM], VM)
    V(a, "v_mov_b32 v%d, 0", [], [VL], VL)
    V(a, "v_mov_b32 v%d, 0", [], [VL2], VL2)
    a.wait_vm("Q1")

    mf = [(t, kk) for t in range(20) for kk in range(4)]

    def kread(n):
        t, kk = mf[n]
        if t == 16 and kk == 0:
            for k2 in range(4):
                V(a, "v_add_u32 v%d, 0x10000, v%d", [KA1 + k2], [KA1 + k2], KA1 + k2, KA1 + k2)
        a.ds_read("ds_read_b128", F1 + 4 * (n % RING1), 4, KA1 + kk, (t % 16) * 4096, ("K1", n))

    def mx(tt):
        b = S1 + 4 * tt
        V(a, "v_max3_f32 v%d, v%d, v%d, v%d", [VM, b, b + 1], [VM], VM, VM, b, b + 1)
        V(a, "v_max3_f32 v%d, v%d, v%d, v%d", [VM, b + 2, b + 3], [VM], VM, VM, b + 2, b + 3)
    for n in range(RING1):
        kread(n)
    for n in range(80):
        t, kk = mf[n]
        a.wait_lds(("K1", n))
        a.mfma(False, S1 + 4 * t, F1 + 4 * (n % RING1), Q1 + 4 * kk, czero=(kk == 0))
        if n + RING1 < 80:
            kread(n + RING1)
        if kk == 3 and t >= 2:
            mx(t - 2)
    mx(18); mx(19)
    for sw in ("v_permlane16_swap_b32", "v_permlane32_swap_b32"):
        V(a, "v_mov_b32 v%d, v%d", [VM], [VT0], VT0, VM)
        V(a, "%s v%d, v%d", [VM, VT0], [VM, VT0], sw, VM, VT0, perm=True)
        V(a, "v_max_f32 v%d, v%d, v%d", [VM, VT0], [VM], VM, VM, VT0)
    V(a, "v_mul_f32 v%d, 0x%08x, v%d", [VM], [VM], VM, NCBITS, VM)

    mf2 = [(p, d) for p in range(10) for d in range(8)]

    def vreads(n):
        p, d = mf2[n]
        if p == 8 and d == 0:
            for d2 in range(8):
                V(a, "v_add_u32 v%d, 0x10000, v%d", [VA1 + d2], [VA1 + d2], VA1 + d2, VA1 + d2)
        slot = n % RING1
        for u in range(2):
            aa = 2 * p + u
            a.ds_read("ds_read_b64_tr_b16", F1 + 4 * slot + 2 * u, 2, VA1 + d, (aa % 16) * 4096, ("V1", n))
    R2 = 7
    for n in range(R2):
        vreads(n)
    for op in sm_work(a, S1):
        op()
    for p in range(10):
        nxt = sm_work(a, S1 + 8 * (p + 1)) if p < 9 else []
        for d in range(8):
            n = 8 * p + d
            a.wait_lds(("V1", n))
            if not NOPV or p == 0:
                a.mfma(False, O1 + 4 * d, F1 + 4 * (n % RING1), S1 + 8 * p, czero=(p == 0))
            if n + R2 < 80:
                vreads(n + R2)
            lo = (28 * d) // 8
            hi = (28 * (d + 1)) // 8
            for op in nxt[lo:hi]:
                op()
    V(a, "v_add_f32 v%d, v%d, v%d", [VL, VL2], [VL], VL, VL, VL2)
    for sw in ("v_permlane16_swap_b32", "v_permlane32_swap_b32"):
        V(a, "v_mov_b32 v%d, v%d", [VL], [VT0], VT0, VL)
        V(a, "%s v%d, v%d", [VL, VT0], [VL, VT0], sw, VL, VT0, perm=True)
        V(a, "v_add_f32 v%d, v%d, v%d", [VL, VT0], [VL], VL, VL, VT0)
    V(a, "v_rcp_f32 v%d, v%d", [VL], [VL], VL, VL, trans=True)
    for i in range(32):
        V(a, "v_mul_f32 v%d, v%d, v%d", [O1 + i, VL], [O1 + i], O1 + i, O1 + i, VL)
    for i in range(16):
        V(a, "v_cvt_pk_bf16_f32 v%d, v%d, v%d", [O1 + 2 * i, O1 + 2 * i + 1], [O1 + i], O1 + i, O1 + 2 * i, O1 + 2 * i + 1)
    for e in range(4):
        x = O1 + 4 * e
        V(a, "v_permlane16_swap_b32 v%d, v%d", [x, x + 2], [x, x + 2], x, x + 2, perm=True)
        V(a, "v_permlane16_swap_b32 v%d, v%d", [x + 1, x + 3], [x + 1, x + 3], x + 1, x + 3, perm=True)
    for e in range(4):
        x = O1 + 4 * e
        a.vmem(("buffer_store_dwordx4 v[%d:%d], v%d, s[%d:%d], 0 offen offset:%d" + STPOL) % (x, x + 3, VOFF1S, SO, SO + 3, 64 * e),
               "ST", reads=list(range(x, x + 4)) + [VOFF1S], store=True)


def build():
    a = Asm()
    a.raw("s_cmp_ge_u32 s2, 256")
    a.raw("s_cbranch_scc1 L_end")
    if STAMP:
        for i in range(64, 96):
            a.raw("s_mov_b32 s%d, 0" % i)
    a.stamp(0)
    if STAMP:
        a.raw("s_memrealtime s[94:95]")
        a.raw("s_waitcnt lgkmcnt(0)")
    prologue(a)
    if PRIO:
        a.raw("s_cmp_ge_u32 s%d, 4" % SWAVE)
        a.raw("s_cbranch_scc1 L_noprio")
        a.raw("s_setprio %d" % PRIO)
        a.label("L_noprio")
    a.raw("s_cmp_ge_u32 s%d, 4" % SWAVE)
    a.raw("s_cbranch_scc1 L_bpre")
    q_from_lds(a)
    a.stamp(1)
    qk32(a, barriers=True)
    a.stamp(2)
    a.wait_vm("V")
    a.raw("s_barrier")
    a.stamp(3)
    a.fence()
    a.raw("s_branch L_common")
    a.label("L_bpre")
    a.vm_q = ["K%d" % n for n in range(10)]; a.lds_q = []
    a.fence()
    a.stamp(1)
    for t in range(10):
        a.wait_vm("K%d" % t)
        a.raw("s_barrier")
        if t == VAT:
            v_dma(a)
        if t == QAT:
            q_loads32(a)
    a.wait_vm("V")
    a.raw("s_barrier")
    if QAT >= 10:
        q_loads32(a)
    a.wait_vm("Q")
    a.stamp(2)
    qk32(a, barriers=False)
    a.stamp(3)
    a.fence()
    a.label("L_common")
    a.vm_q = []; a.lds_q = []

    def q1_prefetch():
        a.raw("s_cmp_ge_u32 s%d, 4" % SWAVE)
        a.raw("s_cbranch_scc1 L_noq1")
        q1_addr(a)
        for kk in range(4):
            a.vmem("buffer_load_dwordx4 v[%d:%d], v%d, s[%d:%d], 0 offen offset:%d" % (Q1 + 4 * kk, Q1 + 4 * kk + 3, VT2, SQ, SQ + 3, 64 * kk),
                   "Q1", reads=[VT2], writes=range(Q1 + 4 * kk, Q1 + 4 * kk + 4))
        a.label("L_noq1")
    smpv32(a, q1_prefetch)
    a.stamp(4)
    epilogue32(a)
    a.stamp(5)
    a.raw("s_cmp_ge_u32 s%d, 4" % SWAVE)
    a.raw("s_cbranch_scc1 L_fin")
    block16(a)
    a.label("L_fin")
    if STAMP:
        a.raw("s_waitcnt vmcnt(0)")
        a.stamp(7)
        a.raw("s_memrealtime s[92:93]")
        a.raw("s_waitcnt lgkmcnt(0)")
        a.stamp_store()
    a.label("L_end")
    a.raw("s_endpgm")
    return a


if __name__ == "__main__":
    a = build()
    args = [x for x in sys.argv[1:] if not x.startswith("--")]
    out = args[0] if args else "standalone__gqa_softmax__near_ridge.s"
    open(out, "w").write(a.text())
    print("instructions:", len(a.lines), "nops:", a.nops)
```

```python
import sys, math

HEADER = """; Kernarg layout for this problem (48 bytes, ptrs only, base s[0:1]):
;   offset   0: d_in[0] q  shape=(8, 32, 320, 128) dtype=bfloat16 strides=(2621440, 81920, 256, 2) contiguous=True
;   offset   8: d_in[1] k  shape=(8, 8, 320, 128) dtype=bfloat16 strides=(655360, 81920, 256, 2) contiguous=True
;   offset  16: d_in[2] v  shape=(8, 8, 320, 128) dtype=bfloat16 strides=(655360, 81920, 256, 2) contiguous=True
; @launch grid=(256,1,1) block=(512,1,1) lds=163840
.amdgcn_target "amdgcn-amd-amdhsa--gfx950"
.text
.globl standalone__gqa_softmax__near_ridge_kernel
.p2align 8
.type standalone__gqa_softmax__near_ridge_kernel,@function
standalone__gqa_softmax__near_ridge_kernel:
"""
FOOTER = """.section .rodata,"a"
.p2align 6
.amdhsa_kernel standalone__gqa_softmax__near_ridge_kernel
  .amdhsa_next_free_vgpr 256
  .amdhsa_next_free_sgpr 100
  .amdhsa_accum_offset 256
  .amdhsa_group_segment_fixed_size 0
  .amdhsa_kernarg_size 48
  .amdhsa_user_sgpr_count 2
  .amdhsa_user_sgpr_kernarg_segment_ptr 1
  .amdhsa_system_sgpr_workgroup_id_x 1
.end_amdhsa_kernel
"""

LDS_V = 81920
DBGSTAMP = "--dbgstamp" in sys.argv
STAMP = "--stamp" in sys.argv or DBGSTAMP
NOEXP = "--noexp" in sys.argv
NOVREAD = "--novread" in sys.argv
NOSM = "--nosm" in sys.argv
NOPV = "--nopv" in sys.argv


class Asm:
    def __init__(self):
        self.lines = []
        self.slot = 0
        self.valu_w = {}
        self.trans_w = {}
        self.mfma_w = {}
        self.mfma_c = {}
        self.store_r = {}
        self.sgpr_valu_w = {}
        self.lds_q = []
        self.vm_q = []
        self.nops = 0

    def raw(self, text, cost=1):
        self.lines.append("    " + text)
        self.slot += cost

    def label(self, name):
        self.lines.append(name + ":")

    def comment(self, t):
        self.lines.append("    ; " + t)

    def need(self, pslot, ws):
        have = self.slot - pslot - 1
        if have < ws:
            k = ws - have
            self.nops += k
            while k > 0:
                n = min(k, 16)
                self.raw("s_nop %d" % (n - 1), cost=n)
                k -= n

    def fence(self):
        self.raw("s_nop 15", cost=16)
        self.valu_w.clear(); self.trans_w.clear(); self.mfma_w.clear(); self.mfma_c.clear()
        self.store_r.clear(); self.sgpr_valu_w.clear()

    MF_RD = {4: 8, 8: 12}
    MF_OV = {4: 6, 8: 10}
    MF_WAR = {4: 3, 8: 7}

    def _chk_read_any(self, regs):
        for r in regs:
            if r in self.mfma_w:
                s, p, _ = self.mfma_w[r]
                self.need(s, self.MF_RD[p])

    def valu(self, text, reads=(), writes=(), trans=False, perm=False, sreads=()):
        self._chk_read_any(reads)
        for r in reads:
            if not trans and r in self.trans_w:
                self.need(self.trans_w[r], 1)
            if perm and r in self.valu_w:
                self.need(self.valu_w[r], 2)
        for r in writes:
            if r in self.mfma_w:
                s, p, _ = self.mfma_w[r]
                self.need(s, self.MF_RD[p])
            if r in self.mfma_c:
                s, p = self.mfma_c[r]
                self.need(s, self.MF_WAR[p])
            if r in self.store_r:
                self.need(self.store_r[r], 2)
        for s in sreads:
            if s in self.sgpr_valu_w:
                self.need(self.sgpr_valu_w[s], 2)
        cur = self.slot
        self.raw(text)
        for r in writes:
            self.valu_w[r] = cur
            self.mfma_w.pop(r, None)
            if trans:
                self.trans_w[r] = cur
            else:
                self.trans_w.pop(r, None)

    def readfirstlane(self, sreg, vreg):
        if vreg in self.valu_w:
            self.need(self.valu_w[vreg], 1)
        cur = self.slot
        self.raw("v_readfirstlane_b32 s%d, v%d" % (sreg, vreg))
        self.sgpr_valu_w[sreg] = cur

    def mfma(self, big, d, a, b, czero=False):
        n = 16 if big else 4
        passes = 8 if big else 4
        name = "v_mfma_f32_32x32x16_bf16" if big else "v_mfma_f32_16x16x32_bf16"
        areg = list(range(a, a + 4)); breg = list(range(b, b + 4)); dreg = list(range(d, d + n))
        for r in areg + breg:
            if r in self.valu_w:
                self.need(self.valu_w[r], 2)
            if r in self.mfma_w:
                s, p, _ = self.mfma_w[r]
                self.need(s, self.MF_RD[p])
        if not czero:
            for r in dreg:
                if r in self.valu_w:
                    self.need(self.valu_w[r], 2)
                if r in self.mfma_w:
                    s, p, db = self.mfma_w[r]
                    if not (db == d and p == passes):
                        self.need(s, self.MF_OV[p])
        else:
            for r in dreg:
                if r in self.mfma_w:
                    s, p, db = self.mfma_w[r]
                    self.need(s, self.MF_RD[p])
        cur = self.slot
        c = "0" if czero else "v[%d:%d]" % (d, d + n - 1)
        self.raw("%s v[%d:%d], v[%d:%d], v[%d:%d], %s" % (name, d, d + n - 1, a, a + 3, b, b + 3, c))
        for r in dreg:
            self.mfma_w[r] = (cur, passes, d)
            self.valu_w.pop(r, None); self.trans_w.pop(r, None)
            if not czero:
                self.mfma_c[r] = (cur, passes)

    def ds_read(self, op, dst, nregs, addr, offset, tag):
        if NOVREAD and "tr" in op:
            return
        self._chk_read_any([addr])
        for r in range(dst, dst + nregs):
            if r in self.mfma_w:
                s, p, _ = self.mfma_w[r]
                self.need(s, self.MF_RD[p])
        assert 0 <= offset < 65536
        self.raw("%s v[%d:%d], v%d offset:%d" % (op, dst, dst + nregs - 1, addr, offset))
        for r in range(dst, dst + nregs):
            self.valu_w.pop(r, None); self.trans_w.pop(r, None); self.mfma_w.pop(r, None)
        self.lds_q.append(tag)

    def wait_lds(self, tag):
        if NOVREAD and tag[0] in ("V", "V1"):
            return
        if tag not in self.lds_q:
            return
        idx = max(i for i, t in enumerate(self.lds_q) if t == tag)
        n = len(self.lds_q) - 1 - idx
        assert n <= 15
        self.raw("s_waitcnt lgkmcnt(%d)" % n)
        self.lds_q = self.lds_q[idx + 1:]

    def vmem(self, text, tag, reads=(), writes=(), sreads=(), store=False):
        self._chk_read_any(reads)
        for r in writes:
            if r in self.mfma_w:
                s, p, _ = self.mfma_w[r]
                self.need(s, self.MF_RD[p])
        for s in sreads:
            if s in self.sgpr_valu_w:
                self.need(self.sgpr_valu_w[s], 5)
        cur = self.slot
        self.raw(text)
        for r in writes:
            self.valu_w.pop(r, None); self.trans_w.pop(r, None); self.mfma_w.pop(r, None)
        if store:
            for r in reads:
                self.store_r[r] = cur
        self.vm_q.append(tag)

    def wait_vm(self, tag):
        idx = max(i for i, t in enumerate(self.vm_q) if t == tag)
        n = len(self.vm_q) - 1 - idx
        assert n <= 63
        self.raw("s_waitcnt vmcnt(%d)" % n)
        self.vm_q = self.vm_q[idx + 1:]

    def stamp(self, i):
        if not STAMP:
            return
        self.raw("s_memtime s[%d:%d]" % (64 + 2 * i, 65 + 2 * i))
        self.raw("s_waitcnt lgkmcnt(0)")
        self.lds_q = []

    def stamp_store(self):
        if not STAMP:
            return
        if DBGSTAMP:
            self.raw("s_cmp_lg_u32 s2, 17")
            self.raw("s_cbranch_scc1 L_end")
            self.raw("s_and_b32 s12, s%d, 3" % SWAVE)
            self.raw("s_cmp_lg_u32 s12, 0")
            self.raw("s_cbranch_scc1 L_end")
            self.raw("s_load_dwordx2 s[4:5], s[0:1], 32")
            self.raw("s_waitcnt lgkmcnt(0)")
            self.raw("s_mov_b32 s6, 256")
            self.raw("s_mov_b32 s7, 0x00020000")
            self.raw("s_lshl_b32 s12, s%d, 3" % SWAVE)
            self.raw("s_sub_u32 s92, s92, s94")
            self.raw("s_nop 7", cost=8)
            for j, i in enumerate((11, 1, 2, 3, 4, 5, 7, 14)):
                if i != 14:
                    self.raw("s_sub_u32 s%d, s%d, s64" % (64 + 2 * i, 64 + 2 * i))
                self.raw("v_mov_b32 v1, s%d" % (64 + 2 * i))
                self.raw("v_mov_b32 v2, s12")
                self.raw("buffer_store_dword v1, v2, s[4:7], 0 offen offset:%d" % (4 * j))
                self.raw("s_nop 3", cost=4)
            return
        self.raw("s_load_dwordx2 s[4:5], s[0:1], 40")
        self.raw("s_waitcnt lgkmcnt(0)")
        self.raw("s_mov_b32 s6, 0x1000000")
        self.raw("s_mov_b32 s7, 0x00020000")
        self.raw("s_lshl_b32 s12, s2, 3")
        self.raw("s_add_u32 s12, s12, s%d" % SWAVE)
        self.raw("s_lshl_b32 s12, s12, 6")
        self.raw("s_nop 7", cost=8)
        for i in range(16):
            self.raw("v_mov_b32 v1, s%d" % (64 + 2 * i))
            self.raw("v_mov_b32 v2, s12")
            self.raw("buffer_store_dword v1, v2, s[4:7], 0 offen offset:%d" % (4 * i))
            self.raw("s_nop 3", cost=4)

    def text(self):
        return HEADER + "\n".join(self.lines) + "\n" + FOOTER


S0 = 0
O0 = 160
Q0 = 160
KF0 = 192
RING0 = 224
KA0 = 224
VA0 = 244
VM = 248
VL = 249
VOFF = 250
VLANE = 251
VT0 = 252
VT1 = 253
VT2 = 254
VL2 = 255
SQ, SK, SV, SO = 20, 24, 28, 32
SWAVE = 18
RING = 5
import struct
CBITS = struct.unpack("<I", struct.pack("<f", math.log2(math.e) / math.sqrt(128.0)))[0]
NCBITS = CBITS ^ 0x80000000


def opt(name, default):
    for x in sys.argv:
        if x.startswith("--%s=" % name):
            return int(x.split("=")[1])
    return default


PRIO = opt("prio", 0)
VAT = opt("vat", 9)
QAT = opt("qat", 9)
Q1AT = opt("q1at", 6)
VS = opt("vs", 5)
VPRE = opt("vpre", 4)
PF = opt("pf", 1)
STPOL = {0: "", 1: " nt", 2: " sc1", 3: " sc0 sc1", 4: " sc1 nt", 5: " sc0 sc1 nt"}[opt("stpol", 0)]
T0, T1, T2, T3, T4, T5 = 0, 1, 2, 3, 4, 5
VDK, VDV, VDQ = 8, 9, 10
VDK2 = 14
ROT = opt("rot", 1)
DEPTH = opt("depth", 4)
PA = opt("pa", 9)
PB = opt("pb", 5)
Q16AT = opt("q16at", 6)
ORDER = opt("order", 0)
Q16N = opt("q16n", 0)
EPD = opt("epd", 2)
EPR = opt("epr", 3)
BARS = []
for x in sys.argv:
    if x.startswith("--bars="):
        BARS = [tuple(int(z) for z in y.split(":")) for y in x.split("=")[1].split(",")]


def b_vbar(a, pos):
    for (pb, cum, pa) in BARS:
        if pb == pos:
            a.wait_vm("V%d" % (cum - 1))
            a.raw("s_barrier")


def tile_off(a, n):
    a.raw("s_add_u32 s41, s48, %d" % (n * 8192))
    a.raw("s_cmp_ge_u32 s41, 81920")
    a.raw("s_cselect_b32 s49, 81920, 0")
    a.raw("s_sub_u32 s41, s41, s49")
    a.raw("s_add_u32 s41, s41, s39")

VQA = 16


def V(a, fmt, reads, writes, *args, **kw):
    a.valu(fmt % args, reads, writes, **kw)


def prologue(a):
    a.raw("s_load_dwordx4 s[4:7], s[0:1], 0")
    a.raw("s_load_dwordx4 s[8:11], s[0:1], 16")
    if PF:
        a.raw("s_getpc_b64 s[46:47]")
        a.label("L_pc")
        V(a, "v_lshlrev_b32 v%d, 7, v0", [0], [VT0], VT0)
        V(a, "v_subrev_u32 v%d, 0x8000, v%d", [VT0], [VT0], VT0, VT0)
        V(a, "v_min_u32 v%d, L_end-L_pc, v%d", [VT0], [VT0], VT0, VT0)
        a.vmem("global_load_dword v159, v%d, s[46:47]" % VT0, "PF", reads=[VT0], writes=[159])
    a.raw("s_and_b32 s12, s2, 7")
    a.raw("s_lshr_b32 s13, s2, 3")
    a.raw("s_lshr_b32 s14, s13, 2")
    a.raw("s_lshl_b32 s14, s14, 3")
    a.raw("s_add_u32 s14, s14, s12")
    a.raw("s_and_b32 s13, s13, 3")
    a.raw("s_lshl_b32 s15, s14, 2")
    a.raw("s_add_u32 s15, s15, s13")
    a.raw("s_mul_i32 s16, s14, 81920")
    a.raw("s_mul_i32 s17, s15, 81920")
    V(a, "v_lshrrev_b32 v%d, 6, v0", [0], [VT0], VT0)
    V(a, "v_and_b32 v%d, 63, v0", [0], [VLANE], VLANE)
    a.readfirstlane(SWAVE, VT0)
    L = VLANE
    V(a, "v_lshrrev_b32 v%d, 4, v%d", [L], [T0], T0, L)
    V(a, "v_and_b32 v%d, 15, v%d", [L], [T1], T1, L)
    V(a, "v_xor_b32 v%d, v%d, v%d", [T0, T1], [T2], T2, T0, T1)
    V(a, "v_lshlrev_b32 v%d, 4, v%d", [T2], [T2], T2, T2)
    V(a, "v_lshl_or_b32 v%d, v%d, 8, v%d", [T0, T2], [VDQ], VDQ, T0, T2)
    for i in range(1, 4):
        V(a, "v_xor_b32 v%d, %d, v%d", [VDQ], [VDQ + i], VDQ + i, i << 6, VDQ)
    a.raw("s_and_b32 s36, s%d, 3" % SWAVE)
    a.raw("s_lshr_b32 s37, s%d, 2" % SWAVE)
    a.raw("s_mul_i32 s38, s36, 80")
    a.raw("s_lshl_b32 s39, s37, 5")
    a.raw("s_add_u32 s38, s38, s39")
    a.raw("s_lshl_b32 s40, s%d, 10" % SWAVE)
    a.raw("s_and_b32 s42, s%d, 1" % SWAVE)
    a.raw("s_lshl_b32 s43, s42, 7")
    a.raw("s_mul_i32 s48, s13, 5")
    a.raw("s_add_u32 s48, s48, 1")
    a.raw("s_lshr_b32 s48, s48, 1")
    a.raw("s_mul_i32 s48, s48, %d" % (8192 if ROT else 0))
    a.raw("s_lshl_b32 s45, s38, 8")
    a.raw("s_waitcnt lgkmcnt(0)")
    a.stamp(8)
    for (srd, lo, off) in ((SQ, 4, 17), (SK, 6, 16), (SV, 8, 16), (SO, 10, 17)):
        a.raw("s_add_u32 s%d, s%d, s%d" % (srd, lo, off))
        a.raw("s_addc_u32 s%d, s%d, 0" % (srd + 1, lo + 1))
        a.raw("s_mov_b32 s%d, 81920" % (srd + 2))
        a.raw("s_mov_b32 s%d, 0x00020000" % (srd + 3))
    a.raw("s_lshl_b32 s39, s36, 11")
    V(a, "v_xor_b32 v%d, s43, v%d", [VDQ], [VDK], VDK, VDQ)
    V(a, "v_xor_b32 v%d, 64, v%d", [VDK], [VDK2], VDK2, VDK)
    a.raw("s_cmp_ge_u32 s%d, 4" % SWAVE)
    a.raw("s_cbranch_scc1 L_noqdma")
    for i in range(8):
        a.raw("s_add_u32 m0, s40, %d" % (i * 8192 + LDS_V))
        a.raw("s_add_u32 s41, s45, %d" % (i * 1024))
        a.vmem("buffer_load_dwordx4 v%d, s[%d:%d], s41 offen lds" % (VDQ + (i & 3), SQ, SQ + 3), "Q", reads=[VDQ + (i & 3)])
    a.stamp(9)
    a.raw("s_branch L_nokdma")
    a.label("L_noqdma")
    for n in range(DEPTH):
        k_dma_tile(a, n)
        if n == 0:
            a.stamp(10)
    a.stamp(11)
    a.label("L_nokdma")
    V(a, "v_lshlrev_b32 v%d, 1, v%d", [T0], [T3], T3, T0)
    V(a, "v_lshlrev_b32 v%d, 1, v%d", [T3], [T3], T3, T3)
    V(a, "v_xor_b32 v%d, v%d, v%d", [T3, T1], [T3], T3, T3, T1)
    V(a, "v_lshlrev_b32 v%d, 4, v%d", [T3], [T3], T3, T3)
    V(a, "v_lshl_or_b32 v%d, v%d, 8, v%d", [T0, T3], [VDV], VDV, T0, T3)
    V(a, "v_and_b32 v%d, 31, v%d", [L], [T2], T2, L)
    V(a, "v_lshrrev_b32 v%d, 5, v%d", [L], [T3], T3, L)
    V(a, "v_add_u32 v%d, s38, v%d", [T2], [T4], T4, T2)
    V(a, "v_lshlrev_b32 v%d, 4, v%d", [T3], [T5], T5, T3)
    V(a, "v_lshl_or_b32 v%d, v%d, 8, v%d", [T4, T5], [VOFF], VOFF, T4, T5)
    V(a, "v_xor_b32 v%d, v%d, v%d", [T1, T3], [T4], T4, T1, T3)
    V(a, "v_lshlrev_b32 v%d, 4, v%d", [T4], [T4], T4, T4)
    V(a, "v_lshl_or_b32 v%d, v%d, 8, v%d", [T2, T4], [KA0], KA0, T2, T4)
    for kk in range(1, 8):
        V(a, "v_xor_b32 v%d, %d, v%d", [KA0], [KA0 + kk], KA0 + kk, kk << 5, KA0)
    V(a, "v_lshrrev_b32 v%d, 2, v%d", [T2], [T5], T5, T2)
    V(a, "v_lshl_or_b32 v%d, v%d, 13, v%d", [T5, T4], [T4], T4, T5, T4)
    V(a, "v_and_b32 v%d, 3, v%d", [T2], [T5], T5, T2)
    V(a, "v_lshl_or_b32 v%d, v%d, 8, v%d", [T5, T4], [T4], T4, T5, T4)
    a.raw("s_add_u32 s41, s40, %d" % LDS_V)
    V(a, "v_add_u32 v%d, s41, v%d", [T4], [VQA], VQA, T4)
    for kk in range(1, 8):
        V(a, "v_xor_b32 v%d, %d, v%d", [VQA], [VQA + kk], VQA + kk, kk << 5, VQA)
    V(a, "v_bfe_u32 v%d, v%d, 2, 2", [L], [T2], T2, L)
    V(a, "v_lshl_or_b32 v%d, v%d, 1, v%d", [T2, T3], [T4], T4, T2, T3)
    V(a, "v_bfe_u32 v%d, v%d, 4, 1", [L], [T5], T5, L)
    V(a, "v_xor_b32 v%d, v%d, v%d", [T4, T5], [T4], T4, T4, T5)
    V(a, "v_lshlrev_b32 v%d, 5, v%d", [T4], [T4], T4, T4)
    V(a, "v_lshl_add_u32 v%d, v%d, 2, v%d", [T3, T2], [T5], T5, T3, T2)
    V(a, "v_lshl_or_b32 v%d, v%d, 8, v%d", [T5, T4], [T4], T4, T5, T4)
    V(a, "v_and_b32 v%d, 3, v%d", [L], [T5], T5, L)
    V(a, "v_lshl_or_b32 v%d, v%d, 3, v%d", [T5, T4], [T4], T4, T5, T4)
    V(a, "v_add_u32 v%d, %d, v%d", [T4], [VA0], VA0, LDS_V, T4)
    for d in range(1, 4):
        V(a, "v_xor_b32 v%d, %d, v%d", [VA0], [VA0 + d], VA0 + d, d << 6, VA0)
    V(a, "v_mov_b32 v%d, 0xff800000", [], [VM], VM)
    V(a, "v_mov_b32 v%d, 0", [], [VL], VL)
    V(a, "v_mov_b32 v%d, 0", [], [VL2], VL2)
    V(a, "v_mov_b32 v%d, v%d", [VDV], [VT2], VT2, VDV)
    V(a, "v_xor_b32 v%d, 32, v%d", [VDV], [VT1], VT1, VDV)


def q_from_lds(a):
    a.vm_q = ["Q"] * 8
    a.wait_vm("Q")
    a.stamp(12)
    for kk in range(8):
        a.ds_read("ds_read_b128", Q0 + 4 * kk, 4, VQA + kk, 0, ("Q", kk))
    a.wait_lds(("Q", 7))


def k_dma_tile(a, n):
    for par in range(2):
        a.raw("s_add_u32 m0, s39, %d" % (n * 8192 + par * 1024))
        if par == 0:
            tile_off(a, n)
        else:
            a.raw("s_add_u32 s41, s41, 1024")
        r = VDK if par == 0 else VDK2
        a.vmem("buffer_load_dwordx4 v%d, s[%d:%d], s41 offen lds" % (r, SK, SK + 3), "K%d" % n, reads=[r])


def b_item(a, i):
    items = [("K", n) for n in range(10)]
    qs = [("Q", n) for n in range(4)]
    vs = [("V", n) for n in range(10)]
    items += (vs + qs) if ORDER == 0 else (qs + vs)
    if i >= len(items):
        return
    kind, n = items[i]
    if kind == "K":
        k_dma_tile(a, n)
    elif kind == "Q":
        for kk in (2 * n, 2 * n + 1):
            a.vmem("buffer_load_dwordx4 v[%d:%d], v%d, s[%d:%d], 0 offen offset:%d" % (Q0 + 4 * kk, Q0 + 4 * kk + 3, VOFF, SQ, SQ + 3, 32 * kk),
                   "Q%d" % n, reads=[VOFF], writes=range(Q0 + 4 * kk, Q0 + 4 * kk + 4))
    else:
        v_dma_tile(a, n)


def v_dma_tile(a, n):
    for par in range(2):
        a.raw("s_add_u32 m0, s39, %d" % (n * 8192 + par * 1024 + LDS_V))
        if par == 0:
            tile_off(a, n)
        else:
            a.raw("s_add_u32 s41, s41, 1024")
        r = VT2 if par == 0 else VT1
        a.vmem("buffer_load_dwordx4 v%d, s[%d:%d], s41 offen lds" % (r, SV, SV + 3), "V%d" % n, reads=[r])


def q_loads32(a):
    for kk in range(8):
        a.vmem("buffer_load_dwordx4 v[%d:%d], v%d, s[%d:%d], 0 offen offset:%d" % (Q0 + 4 * kk, Q0 + 4 * kk + 3, VOFF, SQ, SQ + 3, 32 * kk),
               "Q", reads=[VOFF], writes=range(Q0 + 4 * kk, Q0 + 4 * kk + 4))


def qk32(a, barriers, hook=None):
    def kread(t, kk):
        if t == 8 and kk == 0:
            for k2 in range(8):
                V(a, "v_add_u32 v%d, 0x10000, v%d", [KA0 + k2], [KA0 + k2], KA0 + k2, KA0 + k2)
        a.ds_read("ds_read_b128", KF0 + 4 * kk, 4, KA0 + kk, (t % 8) * 8192, ("K", t, kk))

    def maxops(t):
        return [(S0 + 16 * t + 2 * i, S0 + 16 * t + 2 * i + 1) for i in range(8)]

    if barriers == "K":
        a.raw("s_barrier")
        a.stamp(13)
    for kk in range(8):
        kread(0, kk)
    nb = 0
    for t in range(10):
        if barriers == "K" and t < 9:
            a.raw("s_barrier")
            if hook and t + 1 == Q16AT:
                hook()
        pend = maxops(t - 1) if t > 0 else []
        for kk in range(8):
            if barriers == "V":
                if kk == 0:
                    b_item(a, 14 + t + DEPTH)
                b_vbar(a, 8 * t + kk)
            a.wait_lds(("K", t, kk))
            a.mfma(True, S0 + 16 * t, KF0 + 4 * kk, Q0 + 4 * kk, czero=(kk == 0))
            if t < 9:
                kread(t + 1, kk)
            if kk >= 4:
                for _ in range(2):
                    if pend:
                        r0, r1 = pend.pop(0)
                        V(a, "v_max3_f32 v%d, v%d, v%d, v%d", [VM, r0, r1], [VM], VM, VM, r0, r1)
    for (r0, r1) in maxops(9):
        V(a, "v_max3_f32 v%d, v%d, v%d, v%d", [VM, r0, r1], [VM], VM, VM, r0, r1)
    V(a, "v_mov_b32 v%d, v%d", [VM], [VT0], VT0, VM)
    V(a, "v_permlane32_swap_b32 v%d, v%d", [VM, VT0], [VM, VT0], VM, VT0, perm=True)
    V(a, "v_max_f32 v%d, v%d, v%d", [VM, VT0], [VM], VM, VM, VT0)
    V(a, "v_mul_f32 v%d, 0x%08x, v%d", [VM], [VM], VM, NCBITS, VM)


def sm_work(a, base, regs=None, accs=None):
    R = regs if regs else [base + i for i in range(8)]
    AC = accs if accs else (VL, VL2)
    def f(i):
        return lambda: V(a, "v_fmamk_f32 v%d, v%d, 0x%08x, v%d", [R[i], VM], [R[i]], R[i], R[i], CBITS, VM)
    def e(i):
        return lambda: V(a, ("v_mov_b32 v%d, v%d" if NOEXP else "v_exp_f32 v%d, v%d"), [R[i]], [R[i]], R[i], R[i], trans=True)
    def ad(i):
        acc = AC[i & 1]
        return lambda: V(a, "v_add_f32 v%d, v%d, v%d", [acc, R[i]], [acc], acc, acc, R[i])
    def c(i):
        return lambda: V(a, "v_cvt_pk_bf16_f32 v%d, v%d, v%d", [R[2 * i], R[2 * i + 1]], [R[i]], R[i], R[2 * i], R[2 * i + 1])
    order = [f(0), f(1), f(2), f(3), e(0), f(4), e(1), f(5), e(2), f(6), e(3), f(7), e(4), ad(0), e(5), ad(1), e(6), c(0),
             e(7), ad(2), ad(3), c(1), ad(4), ad(5), c(2), ad(6), ad(7), c(3)]
    if NOSM:
        return []
    return order


def smpv32(a, q1_prefetch):
    groups = [(t, m) for t in range(10) for m in range(2)]
    mf = [(g, d) for g in range(20) for d in range(4)]
    avail = {"c": max([cum for (pb, cum, pa) in BARS if pb <= 80] + [0])}

    def vreads(n):
        g, d = mf[n]
        t, m = groups[g]
        assert t < avail["c"], (t, avail)
        if t == 8 and m == 0 and d == 0:
            for d2 in range(4):
                V(a, "v_add_u32 v%d, 0x10000, v%d", [VA0 + d2], [VA0 + d2], VA0 + d2, VA0 + d2)
        slot = n % RING
        for u in range(2):
            a.ds_read("ds_read_b64_tr_b16", RING0 + 4 * slot + 2 * u, 2, VA0 + d, (t % 8) * 8192 + m * 4096 + u * 2048, ("V", n))

    b_vbar(a, 80)
    for n in range(RING):
        vreads(n)
    for op in sm_work(a, S0 + 0):
        op()
    for g in range(20):
        nxt = sm_work(a, S0 + 8 * (g + 1)) if g < 19 else []
        if g > 0:
            b_vbar(a, 80 + g)
            avail["c"] = max([cum for (pb, cum, pa) in BARS if pb <= 80 + g] + [0])
        for d in range(4):
            n = 4 * g + d
            a.wait_lds(("V", n))
            if not NOPV or g == 0:
                a.mfma(True, O0 + 16 * d, RING0 + 4 * (n % RING), S0 + 8 * g, czero=(g == 0))
            if n + RING < 80:
                vreads(n + RING)
            for op in nxt[7 * d: 7 * d + 7]:
                op()


def sm_all(a):
    for g in range(20):
        for op in sm_work(a, S0 + 8 * g):
            op()


def epilogue32(a):
    V(a, "v_add_f32 v%d, v%d, v%d", [VL, VL2], [VL], VL, VL, VL2)
    V(a, "v_mov_b32 v%d, v%d", [VL], [VT0], VT0, VL)
    V(a, "v_permlane32_swap_b32 v%d, v%d", [VL, VT0], [VL, VT0], VL, VT0, perm=True)
    V(a, "v_add_f32 v%d, v%d, v%d", [VL, VT0], [VL], VL, VL, VT0)
    V(a, "v_rcp_f32 v%d, v%d", [VL], [VL], VL, VL, trans=True)
    for d in range(4):
        b = O0 + 16 * d
        for i in range(16):
            V(a, "v_mul_f32 v%d, v%d, v%d", [b + i, VL], [b + i], b + i, b + i, VL)
        for i in range(8):
            V(a, "v_cvt_pk_bf16_f32 v%d, v%d, v%d", [b + 2 * i, b + 2 * i + 1], [b + i], b + i, b + 2 * i, b + 2 * i + 1)
        for hf in range(2):
            x = b + 4 * hf
            V(a, "v_permlane32_swap_b32 v%d, v%d", [x, x + 2], [x, x + 2], x, x + 2, perm=True)
            V(a, "v_permlane32_swap_b32 v%d, v%d", [x + 1, x + 3], [x + 1, x + 3], x + 1, x + 3, perm=True)
        for hf in range(2):
            x = b + 4 * hf
            a.vmem(("buffer_store_dwordx4 v[%d:%d], v%d, s[%d:%d], 0 offen offset:%d" + STPOL) % (x, x + 3, VOFF, SO, SO + 3, 64 * d + 32 * hf),
                   "ST", reads=list(range(x, x + 4)) + [VOFF], store=True)


def hole(h):
    return S0 + 8 * h + 4


def q16(kk):
    return hole(kk)


S1 = 32
O1 = 112
KR16 = 160
KA1 = 224
VA1 = 228
VOFF1S = 236
U0, U1, U2, U3 = 237, 238, 239, 240
RING1 = 8
VL16 = VL


def va1(d):
    return VA1 + d


def o16(d):
    return O1 + 4 * d


def q16_loads(a):
    L = VLANE
    a.raw("s_add_u32 s44, s38, 64")
    V(a, "v_and_b32 v%d, 15, v%d", [L], [VT0], VT0, L)
    V(a, "v_add_u32 v%d, s44, v%d", [VT0], [VT0], VT0, VT0)
    V(a, "v_lshrrev_b32 v%d, 4, v%d", [L], [VT2], VT2, L)
    V(a, "v_lshlrev_b32 v%d, 4, v%d", [VT2], [VT2], VT2, VT2)
    V(a, "v_lshl_add_u32 v%d, v%d, 8, v%d", [VT0, VT2], [VT2], VT2, VT0, VT2)
    for kk in range(4):
        a.vmem("buffer_load_dwordx4 v[%d:%d], v%d, s[%d:%d], 0 offen offset:%d" % (q16(kk), q16(kk) + 3, VT2, SQ, SQ + 3, 64 * kk),
               "Q1", reads=[VT2], writes=range(q16(kk), q16(kk) + 4))


def block16(a):
    L = VLANE
    V(a, "v_and_b32 v%d, 15, v%d", [L], [U0], U0, L)
    V(a, "v_lshrrev_b32 v%d, 4, v%d", [L], [U1], U1, L)
    V(a, "v_xor_b32 v%d, v%d, v%d", [U0, U1], [U2], U2, U0, U1)
    V(a, "v_lshlrev_b32 v%d, 4, v%d", [U2], [U2], U2, U2)
    V(a, "v_lshl_or_b32 v%d, v%d, 8, v%d", [U0, U2], [KA1], KA1, U0, U2)
    for kk in range(1, 4):
        V(a, "v_xor_b32 v%d, %d, v%d", [KA1], [KA1 + kk], KA1 + kk, kk << 6, KA1)
    V(a, "v_mov_b32 v%d, 0xff800000", [], [VM], VM)

    mf = [(t, kk) for t in range(20) for kk in range(4)]

    def kread(n):
        t, kk = mf[n]
        if t == 16 and kk == 0:
            for k2 in range(4):
                V(a, "v_add_u32 v%d, 0x10000, v%d", [KA1 + k2], [KA1 + k2], KA1 + k2, KA1 + k2)
        a.ds_read("ds_read_b128", KR16 + 4 * (n % RING1), 4, KA1 + kk, (t % 16) * 4096, ("K1", n))

    def mx(tt):
        b = S1 + 4 * tt
        V(a, "v_max3_f32 v%d, v%d, v%d, v%d", [VM, b, b + 1], [VM], VM, VM, b, b + 1)
        V(a, "v_max3_f32 v%d, v%d, v%d, v%d", [VM, b + 2, b + 3], [VM], VM, VM, b + 2, b + 3)
    for n in range(RING1):
        kread(n)
    V(a, "v_bfe_u32 v%d, v%d, 2, 2", [L], [U2], U2, L)
    V(a, "v_and_b32 v%d, 1, v%d", [U1], [U3], U3, U1)
    V(a, "v_lshl_or_b32 v%d, v%d, 1, v%d", [U2, U3], [U3], U3, U2, U3)
    V(a, "v_lshlrev_b32 v%d, 5, v%d", [U3], [U3], U3, U3)
    V(a, "v_lshl_add_u32 v%d, v%d, 2, v%d", [U1, U2], [U2], U2, U1, U2)
    V(a, "v_lshl_or_b32 v%d, v%d, 8, v%d", [U2, U3], [U3], U3, U2, U3)
    V(a, "v_and_b32 v%d, 3, v%d", [L], [U2], U2, L)
    V(a, "v_lshl_or_b32 v%d, v%d, 3, v%d", [U2, U3], [U3], U3, U2, U3)
    V(a, "v_add_u32 v%d, %d, v%d", [U3], [va1(0)], va1(0), LDS_V, U3)
    for d in range(1, 8):
        V(a, "v_xor_b32 v%d, %d, v%d", [va1(0)], [va1(d)], va1(d), d << 5, va1(0))
    V(a, "v_add_u32 v%d, s44, v%d", [U0], [U0], U0, U0)
    V(a, "v_and_b32 v%d, 1, v%d", [U1], [U2], U2, U1)
    V(a, "v_lshlrev_b32 v%d, 5, v%d", [U2], [U2], U2, U2)
    V(a, "v_lshrrev_b32 v%d, 1, v%d", [U1], [U3], U3, U1)
    V(a, "v_lshl_or_b32 v%d, v%d, 4, v%d", [U3, U2], [U2], U2, U3, U2)
    V(a, "v_lshl_add_u32 v%d, v%d, 8, v%d", [U0, U2], [VOFF1S], VOFF1S, U0, U2)
    V(a, "v_mov_b32 v%d, 0", [], [VL], VL)
    V(a, "v_mov_b32 v%d, 0", [], [VL2], VL2)
    a.wait_vm("Q1")
    a.stamp(6)
    for n in range(80):
        t, kk = mf[n]
        a.wait_lds(("K1", n))
        a.mfma(False, S1 + 4 * t, KR16 + 4 * (n % RING1), q16(kk), czero=(kk == 0))
        if n + RING1 < 80:
            kread(n + RING1)
        if kk == 3 and t >= 2:
            mx(t - 2)
    mx(18); mx(19)
    for sw in ("v_permlane16_swap_b32", "v_permlane32_swap_b32"):
        V(a, "v_mov_b32 v%d, v%d", [VM], [VT0], VT0, VM)
        V(a, "%s v%d, v%d", [VM, VT0], [VM, VT0], sw, VM, VT0, perm=True)
        V(a, "v_max_f32 v%d, v%d, v%d", [VM, VT0], [VM], VM, VM, VT0)
    V(a, "v_mul_f32 v%d, 0x%08x, v%d", [VM], [VM], VM, NCBITS, VM)
    seq = [(e, p, j) for e in range(4) for p in range(10) for j in range(2)]

    def vreads(n):
        e, p, j = seq[n]
        r = va1(2 * e + j)
        if p == 8:
            V(a, "v_add_u32 v%d, 0x10000, v%d", [r], [r], r, r)
        for u in range(2):
            aa = 2 * p + u
            a.ds_read("ds_read_b64_tr_b16", KR16 + 4 * (n % RING1) + 2 * u, 2, r, (aa % 16) * 4096, ("V1", n))
    R2 = 7
    for p in range(10):
        if p == 9:
            for n in range(R2):
                vreads(n)
        for op in sm_work(a, S1 + 8 * p):
            op()
    V(a, "v_add_f32 v%d, v%d, v%d", [VL, VL2], [VL], VL, VL, VL2)
    lsum16(a)
    a.stamp(10)
    pend = []
    for n in range(80):
        e, p, j = seq[n]
        a.wait_lds(("V1", n))
        a.mfma(False, o16(2 * e + j), KR16 + 4 * (n % RING1), S1 + 8 * p, czero=(p == 0))
        if n + R2 < 80:
            vreads(n + R2)
        if n % 20 == 3 and e > 0:
            pend = epi16_ops(a, e - 1)
        for _ in range(2):
            if pend:
                pend.pop(0)()
    assert not pend
    for op in epi16_ops(a, 3):
        op()


def lsum32(a):
    V(a, "v_mov_b32 v%d, v%d", [VL], [VT0], VT0, VL)
    V(a, "v_permlane32_swap_b32 v%d, v%d", [VL, VT0], [VL, VT0], VL, VT0, perm=True)
    V(a, "v_add_f32 v%d, v%d, v%d", [VL, VT0], [VL], VL, VL, VT0)
    V(a, "v_rcp_f32 v%d, v%d", [VL], [VL], VL, VL, trans=True)


def lsum16(a):
    for sw in ("v_permlane16_swap_b32", "v_permlane32_swap_b32"):
        V(a, "v_mov_b32 v%d, v%d", [VL16], [VT0], VT0, VL16)
        V(a, "%s v%d, v%d", [VL16, VT0], [VL16, VT0], sw, VL16, VT0, perm=True)
        V(a, "v_add_f32 v%d, v%d, v%d", [VL16, VT0], [VL16], VL16, VL16, VT0)
    V(a, "v_rcp_f32 v%d, v%d", [VL16], [VL16], VL16, VL16, trans=True)


def epi32_ops(a, d):
    ops = []
    b = O0 + 16 * d
    for i in range(16):
        ops.append(lambda i=i: V(a, "v_mul_f32 v%d, v%d, v%d", [b + i, VL], [b + i], b + i, b + i, VL))
    for i in range(8):
        ops.append(lambda i=i: V(a, "v_cvt_pk_bf16_f32 v%d, v%d, v%d", [b + 2 * i, b + 2 * i + 1], [b + i], b + i, b + 2 * i, b + 2 * i + 1))
    for hf in range(2):
        x = b + 4 * hf
        ops.append(lambda x=x: V(a, "v_permlane32_swap_b32 v%d, v%d", [x, x + 2], [x, x + 2], x, x + 2, perm=True))
        ops.append(lambda x=x: V(a, "v_permlane32_swap_b32 v%d, v%d", [x + 1, x + 3], [x + 1, x + 3], x + 1, x + 3, perm=True))
    for hf in range(2):
        x = b + 4 * hf
        ops.append(lambda x=x, hf=hf: a.vmem(("buffer_store_dwordx4 v[%d:%d], v%d, s[%d:%d], 0 offen offset:%d" + STPOL) % (x, x + 3, VOFF, SO, SO + 3, 64 * d + 32 * hf),
                                             "ST", reads=list(range(x, x + 4)) + [VOFF], store=True))
    return ops


def epi16_ops(a, e):
    ops = []
    x = o16(2 * e); y = o16(2 * e + 1)
    for r in list(range(x, x + 4)) + list(range(y, y + 4)):
        ops.append(lambda r=r: V(a, "v_mul_f32 v%d, v%d, v%d", [r, VL16], [r], r, r, VL16))
    ops.append(lambda: V(a, "v_cvt_pk_bf16_f32 v%d, v%d, v%d", [x, x + 1], [x], x, x, x + 1))
    ops.append(lambda: V(a, "v_cvt_pk_bf16_f32 v%d, v%d, v%d", [x + 2, x + 3], [x + 1], x + 1, x + 2, x + 3))
    ops.append(lambda: V(a, "v_cvt_pk_bf16_f32 v%d, v%d, v%d", [y, y + 1], [x + 2], x + 2, y, y + 1))
    ops.append(lambda: V(a, "v_cvt_pk_bf16_f32 v%d, v%d, v%d", [y + 2, y + 3], [x + 3], x + 3, y + 2, y + 3))
    ops.append(lambda: V(a, "v_permlane16_swap_b32 v%d, v%d", [x, x + 2], [x, x + 2], x, x + 2, perm=True))
    ops.append(lambda: V(a, "v_permlane16_swap_b32 v%d, v%d", [x + 1, x + 3], [x + 1, x + 3], x + 1, x + 3, perm=True))
    ops.append(lambda: a.vmem(("buffer_store_dwordx4 v[%d:%d], v%d, s[%d:%d], 0 offen offset:%d" + STPOL) % (x, x + 3, VOFF1S, SO, SO + 3, 64 * e),
                              "ST", reads=list(range(x, x + 4)) + [VOFF1S], store=True))
    return ops


VB0 = 240
RINGP = 4


def pv_dmajor(a, with16, hook=None):
    seq = []
    for d in range(4):
        for t in range(10):
            for m in range(2):
                seq.append(("b", t, m, d))
                if with16:
                    seq.append(("s", t, m, d))
    N = len(seq)
    per = N // 4
    for d in range(4):
        V(a, "v_add_u32 v%d, 0x10000, v%d", [VA0 + d], [VB0 + d], VB0 + d, VA0 + d)

    def vreads(n):
        kind, t, m, d = seq[n]
        slot = RING0 + 4 * (n % RINGP)
        if kind == "s" and t == 8:
            r = va1(2 * d + m)
            V(a, "v_add_u32 v%d, 0x10000, v%d", [r], [r], r, r)
        for u in range(2):
            if kind == "b":
                a.ds_read("ds_read_b64_tr_b16", slot + 2 * u, 2, (VA0 if t < 8 else VB0) + d, (t % 8) * 8192 + m * 4096 + u * 2048, ("V", n))
            else:
                aa = 2 * t + u
                a.ds_read("ds_read_b64_tr_b16", slot + 2 * u, 2, va1(2 * d + m), (aa % 16) * 4096, ("V", n))

    for n in range(RINGP):
        vreads(n)
    pend = []
    for n in range(N):
        kind, t, m, d = seq[n]
        slot = RING0 + 4 * (n % RINGP)
        if hook and n == Q16N:
            hook()
        a.wait_lds(("V", n))
        if kind == "b":
            a.mfma(True, O0 + 16 * d, slot, S0 + 8 * (2 * t + m), czero=(t == 0 and m == 0))
        else:
            a.mfma(False, o16(2 * d + m), slot, hole(2 * t), czero=(t == 0))
        if n + RINGP < N:
            vreads(n + RINGP)
        if n % per == EPD and d > 0:
            pend = epi32_ops(a, d - 1) + (epi16_ops(a, d - 1) if with16 else [])
        for _ in range(EPR):
            if pend:
                pend.pop(0)()
    assert not pend
    for op in epi32_ops(a, 3) + (epi16_ops(a, 3) if with16 else []):
        op()


def build():
    a = Asm()
    a.raw("s_cmp_ge_u32 s2, 256")
    a.raw("s_cbranch_scc1 L_end")
    if STAMP:
        for i in range(64, 96):
            a.raw("s_mov_b32 s%d, 0" % i)
    a.stamp(0)
    if STAMP:
        a.raw("s_memrealtime s[94:95]")
        a.raw("s_waitcnt lgkmcnt(0)")
    prologue(a)
    if PRIO:
        a.raw("s_cmp_ge_u32 s%d, 4" % SWAVE)
        a.raw("s_cbranch_scc1 L_noprio")
        a.raw("s_setprio %d" % PRIO)
        a.label("L_noprio")
    a.raw("s_cmp_ge_u32 s%d, 4" % SWAVE)
    a.raw("s_cbranch_scc1 L_bpre")
    q_from_lds(a)
    a.stamp(1)
    qk32(a, barriers="K")
    a.stamp(2)
    a.fence()
    a.raw("s_branch L_common")
    a.label("L_bpre")
    a.vm_q = ["K%d" % (n // 2) for n in range(2 * DEPTH)]; a.lds_q = []
    a.fence()
    a.stamp(1)
    for t in range(10):
        a.wait_vm("K%d" % t)
        a.raw("s_barrier")
        b_item(a, t + DEPTH)
    if ORDER == 0:
        for t in range(10):
            a.wait_vm("V%d" % t)
            if t == 9:
                a.raw("s_barrier")
            b_item(a, 10 + t + DEPTH)
        a.stamp(6)
        a.wait_vm("Q3")
        a.stamp(12)
        qk32(a, barriers=None)
    else:
        for i in range(4):
            a.wait_vm("Q%d" % i)
            b_item(a, 10 + i + DEPTH)
        a.stamp(12)
        qk32(a, barriers="V")
        a.wait_vm("V9")
        a.raw("s_barrier")
    a.stamp(2)
    a.fence()
    a.label("L_common")
    a.vm_q = []; a.lds_q = []
    sm_all(a)
    V(a, "v_add_f32 v%d, v%d, v%d", [VL, VL2], [VL], VL, VL, VL2)
    lsum32(a)
    a.stamp(3)
    a.raw("s_cmp_ge_u32 s%d, 4" % SWAVE)
    a.raw("s_cbranch_scc1 L_nobar")
    a.raw("s_barrier")
    a.label("L_nobar")
    a.stamp(4)

    def hook():
        a.raw("s_cmp_ge_u32 s%d, 4" % SWAVE)
        a.raw("s_cbranch_scc1 L_noq16")
        q16_loads(a)
        a.label("L_noq16")
    pv_dmajor(a, False, hook)
    a.stamp(5)
    a.raw("s_cmp_ge_u32 s%d, 4" % SWAVE)
    a.raw("s_cbranch_scc1 L_fin")
    block16(a)
    a.label("L_fin")
    if STAMP:
        a.raw("s_waitcnt vmcnt(0)")
        a.stamp(7)
        a.raw("s_memrealtime s[92:93]")
        a.raw("s_waitcnt lgkmcnt(0)")
        a.stamp_store()
    a.label("L_end")
    a.raw("s_endpgm")
    return a


if __name__ == "__main__":
    a = build()
    args = [x for x in sys.argv[1:] if not x.startswith("--")]
    out = args[0] if args else "standalone__gqa_softmax__near_ridge.s"
    open(out, "w").write(a.text())
    print("instructions:", len(a.lines), "nops:", a.nops)
```

```python
import sys, math

HEADER = """; Kernarg layout for this problem (48 bytes, ptrs only, base s[0:1]):
;   offset   0: d_in[0] q  shape=(8, 32, 320, 128) dtype=bfloat16 strides=(2621440, 81920, 256, 2) contiguous=True
;   offset   8: d_in[1] k  shape=(8, 8, 320, 128) dtype=bfloat16 strides=(655360, 81920, 256, 2) contiguous=True
;   offset  16: d_in[2] v  shape=(8, 8, 320, 128) dtype=bfloat16 strides=(655360, 81920, 256, 2) contiguous=True
; @launch grid=(256,1,1) block=(512,1,1) lds=163840
.amdgcn_target "amdgcn-amd-amdhsa--gfx950"
.text
.globl standalone__gqa_softmax__near_ridge_kernel
.p2align 8
.type standalone__gqa_softmax__near_ridge_kernel,@function
standalone__gqa_softmax__near_ridge_kernel:
"""
FOOTER = """.section .rodata,"a"
.p2align 6
.amdhsa_kernel standalone__gqa_softmax__near_ridge_kernel
  .amdhsa_next_free_vgpr 256
  .amdhsa_next_free_sgpr 100
  .amdhsa_accum_offset 256
  .amdhsa_group_segment_fixed_size 0
  .amdhsa_kernarg_size 48
  .amdhsa_user_sgpr_count 2
  .amdhsa_user_sgpr_kernarg_segment_ptr 1
  .amdhsa_system_sgpr_workgroup_id_x 1
.end_amdhsa_kernel
"""

LDS_V = 81920
DBGSTAMP = "--dbgstamp" in sys.argv
STAMP = "--stamp" in sys.argv or DBGSTAMP
NOEXP = "--noexp" in sys.argv
NOVREAD = "--novread" in sys.argv
NOSM = "--nosm" in sys.argv
NOPV = "--nopv" in sys.argv


class Asm:
    def __init__(self):
        self.lines = []
        self.slot = 0
        self.valu_w = {}
        self.trans_w = {}
        self.mfma_w = {}
        self.mfma_c = {}
        self.store_r = {}
        self.sgpr_valu_w = {}
        self.lds_q = []
        self.vm_q = []
        self.nops = 0

    def raw(self, text, cost=1):
        self.lines.append("    " + text)
        self.slot += cost

    def label(self, name):
        self.lines.append(name + ":")

    def comment(self, t):
        self.lines.append("    ; " + t)

    def need(self, pslot, ws):
        have = self.slot - pslot - 1
        if have < ws:
            k = ws - have
            self.nops += k
            while k > 0:
                n = min(k, 16)
                self.raw("s_nop %d" % (n - 1), cost=n)
                k -= n

    def fence(self):
        self.raw("s_nop 15", cost=16)
        self.valu_w.clear(); self.trans_w.clear(); self.mfma_w.clear(); self.mfma_c.clear()
        self.store_r.clear(); self.sgpr_valu_w.clear()

    MF_RD = {4: 8, 8: 12}
    MF_OV = {4: 6, 8: 10}
    MF_WAR = {4: 3, 8: 7}

    def _chk_read_any(self, regs):
        for r in regs:
            if r in self.mfma_w:
                s, p, _ = self.mfma_w[r]
                self.need(s, self.MF_RD[p])

    def valu(self, text, reads=(), writes=(), trans=False, perm=False, sreads=()):
        self._chk_read_any(reads)
        for r in reads:
            if not trans and r in self.trans_w:
                self.need(self.trans_w[r], 1)
            if perm and r in self.valu_w:
                self.need(self.valu_w[r], 2)
        for r in writes:
            if r in self.mfma_w:
                s, p, _ = self.mfma_w[r]
                self.need(s, self.MF_RD[p])
            if r in self.mfma_c:
                s, p = self.mfma_c[r]
                self.need(s, self.MF_WAR[p])
            if r in self.store_r:
                self.need(self.store_r[r], 2)
        for s in sreads:
            if s in self.sgpr_valu_w:
                self.need(self.sgpr_valu_w[s], 2)
        cur = self.slot
        self.raw(text)
        for r in writes:
            self.valu_w[r] = cur
            self.mfma_w.pop(r, None)
            if trans:
                self.trans_w[r] = cur
            else:
                self.trans_w.pop(r, None)

    def readfirstlane(self, sreg, vreg):
        if vreg in self.valu_w:
            self.need(self.valu_w[vreg], 1)
        cur = self.slot
        self.raw("v_readfirstlane_b32 s%d, v%d" % (sreg, vreg))
        self.sgpr_valu_w[sreg] = cur

    def mfma(self, big, d, a, b, czero=False):
        n = 16 if big else 4
        passes = 8 if big else 4
        name = "v_mfma_f32_32x32x16_bf16" if big else "v_mfma_f32_16x16x32_bf16"
        areg = list(range(a, a + 4)); breg = list(range(b, b + 4)); dreg = list(range(d, d + n))
        for r in areg + breg:
            if r in self.valu_w:
                self.need(self.valu_w[r], 2)
            if r in self.mfma_w:
                s, p, _ = self.mfma_w[r]
                self.need(s, self.MF_RD[p])
        if not czero:
            for r in dreg:
                if r in self.valu_w:
                    self.need(self.valu_w[r], 2)
                if r in self.mfma_w:
                    s, p, db = self.mfma_w[r]
                    if not (db == d and p == passes):
                        self.need(s, self.MF_OV[p])
        else:
            for r in dreg:
                if r in self.mfma_w:
                    s, p, db = self.mfma_w[r]
                    self.need(s, self.MF_RD[p])
        cur = self.slot
        c = "0" if czero else "v[%d:%d]" % (d, d + n - 1)
        self.raw("%s v[%d:%d], v[%d:%d], v[%d:%d], %s" % (name, d, d + n - 1, a, a + 3, b, b + 3, c))
        for r in dreg:
            self.mfma_w[r] = (cur, passes, d)
            self.valu_w.pop(r, None); self.trans_w.pop(r, None)
            if not czero:
                self.mfma_c[r] = (cur, passes)

    def ds_read(self, op, dst, nregs, addr, offset, tag):
        if NOVREAD and "tr" in op:
            return
        self._chk_read_any([addr])
        for r in range(dst, dst + nregs):
            if r in self.mfma_w:
                s, p, _ = self.mfma_w[r]
                self.need(s, self.MF_RD[p])
        assert 0 <= offset < 65536
        self.raw("%s v[%d:%d], v%d offset:%d" % (op, dst, dst + nregs - 1, addr, offset))
        for r in range(dst, dst + nregs):
            self.valu_w.pop(r, None); self.trans_w.pop(r, None); self.mfma_w.pop(r, None)
        self.lds_q.append(tag)

    def wait_lds(self, tag):
        if NOVREAD and tag[0] in ("V", "V1"):
            return
        if tag not in self.lds_q:
            return
        idx = max(i for i, t in enumerate(self.lds_q) if t == tag)
        n = len(self.lds_q) - 1 - idx
        assert n <= 15
        self.raw("s_waitcnt lgkmcnt(%d)" % n)
        self.lds_q = self.lds_q[idx + 1:]

    def vmem(self, text, tag, reads=(), writes=(), sreads=(), store=False):
        self._chk_read_any(reads)
        for r in writes:
            if r in self.mfma_w:
                s, p, _ = self.mfma_w[r]
                self.need(s, self.MF_RD[p])
        for s in sreads:
            if s in self.sgpr_valu_w:
                self.need(self.sgpr_valu_w[s], 5)
        cur = self.slot
        self.raw(text)
        for r in writes:
            self.valu_w.pop(r, None); self.trans_w.pop(r, None); self.mfma_w.pop(r, None)
        if store:
            for r in reads:
                self.store_r[r] = cur
        self.vm_q.append(tag)

    def wait_vm(self, tag):
        idx = max(i for i, t in enumerate(self.vm_q) if t == tag)
        n = len(self.vm_q) - 1 - idx
        assert n <= 63
        self.raw("s_waitcnt vmcnt(%d)" % n)
        self.vm_q = self.vm_q[idx + 1:]

    def stamp(self, i):
        if not STAMP:
            return
        self.raw("s_memtime s[%d:%d]" % (64 + 2 * i, 65 + 2 * i))
        self.raw("s_waitcnt lgkmcnt(0)")
        self.lds_q = []

    def stamp_store(self):
        if not STAMP:
            return
        if DBGSTAMP:
            self.raw("s_cmp_lg_u32 s2, 17")
            self.raw("s_cbranch_scc1 L_end")
            self.raw("s_and_b32 s12, s%d, 3" % SWAVE)
            self.raw("s_cmp_lg_u32 s12, 0")
            self.raw("s_cbranch_scc1 L_end")
            self.raw("s_load_dwordx2 s[4:5], s[0:1], 32")
            self.raw("s_waitcnt lgkmcnt(0)")
            self.raw("s_mov_b32 s6, 256")
            self.raw("s_mov_b32 s7, 0x00020000")
            self.raw("s_lshl_b32 s12, s%d, 3" % SWAVE)
            self.raw("s_sub_u32 s92, s92, s94")
            self.raw("s_nop 7", cost=8)
            for j, i in enumerate((11, 1, 2, 3, 4, 5, 7, 14)):
                if i != 14:
                    self.raw("s_sub_u32 s%d, s%d, s64" % (64 + 2 * i, 64 + 2 * i))
                self.raw("v_mov_b32 v1, s%d" % (64 + 2 * i))
                self.raw("v_mov_b32 v2, s12")
                self.raw("buffer_store_dword v1, v2, s[4:7], 0 offen offset:%d" % (4 * j))
                self.raw("s_nop 3", cost=4)
            return
        self.raw("s_load_dwordx2 s[4:5], s[0:1], 40")
        self.raw("s_waitcnt lgkmcnt(0)")
        self.raw("s_mov_b32 s6, 0x1000000")
        self.raw("s_mov_b32 s7, 0x00020000")
        self.raw("s_lshl_b32 s12, s2, 3")
        self.raw("s_add_u32 s12, s12, s%d" % SWAVE)
        self.raw("s_lshl_b32 s12, s12, 6")
        self.raw("s_nop 7", cost=8)
        for i in range(16):
            self.raw("v_mov_b32 v1, s%d" % (64 + 2 * i))
            self.raw("v_mov_b32 v2, s12")
            self.raw("buffer_store_dword v1, v2, s[4:7], 0 offen offset:%d" % (4 * i))
            self.raw("s_nop 3", cost=4)

    def text(self):
        return HEADER + "\n".join(self.lines) + "\n" + FOOTER


S0 = 0
O0 = 160
Q0 = 160
KF0 = 192
RING0 = 224
KA0 = 224
VA0 = 244
VM = 248
VL = 249
VOFF = 250
VLANE = 251
VT0 = 252
VT1 = 253
VT2 = 254
VL2 = 255
SQ, SK, SV, SO = 20, 24, 28, 32
SWAVE = 18
RING = 5
import struct
CBITS = struct.unpack("<I", struct.pack("<f", math.log2(math.e) / math.sqrt(128.0)))[0]
NCBITS = CBITS ^ 0x80000000


def opt(name, default):
    for x in sys.argv:
        if x.startswith("--%s=" % name):
            return int(x.split("=")[1])
    return default


PRIO = opt("prio", 0)
VAT = opt("vat", 9)
QAT = opt("qat", 9)
Q1AT = opt("q1at", 6)
VS = opt("vs", 5)
VPRE = opt("vpre", 4)
PF = opt("pf", 1)
STPOL = {0: "", 1: " nt", 2: " sc1", 3: " sc0 sc1", 4: " sc1 nt", 5: " sc0 sc1 nt"}[opt("stpol", 0)]
T0, T1, T2, T3, T4, T5 = 0, 1, 2, 3, 4, 5
VDK, VDV, VDQ = 232, 9, 10
VDK2 = 233
ROT = opt("rot", 1)
DEPTH = opt("depth", 4)
PA = opt("pa", 9)
PB = opt("pb", 5)
Q16AT = opt("q16at", 6)
POLS = {0: "", 1: " nt", 2: " sc1", 3: " sc0 sc1", 4: " sc1 nt", 5: " sc0 sc1 nt", 6: " sc0 nt"}
QPOL = POLS[opt("qpol", 0)]
KPOL = POLS[opt("kpol", 0)]
ORDER = opt("order", 0)
Q16N = opt("q16n", 0)
BSPLIT = opt("bsplit", 10)
PRIOA = opt("prioa", 0)
QOFS = 4 if ORDER == 2 else 0
EPD = opt("epd", 2)
EPR = opt("epr", 3)
BARS = []
for x in sys.argv:
    if x.startswith("--bars="):
        BARS = [tuple(int(z) for z in y.split(":")) for y in x.split("=")[1].split(",")]


def b_vbar(a, pos):
    for (pb, cum, pa) in BARS:
        if pb == pos:
            a.wait_vm("V%d" % (cum - 1))
            a.raw("s_barrier")


def tile_off(a, n):
    a.raw("s_add_u32 s41, s48, %d" % (n * 8192))
    a.raw("s_cmp_ge_u32 s41, 81920")
    a.raw("s_cselect_b32 s49, 81920, 0")
    a.raw("s_sub_u32 s41, s41, s49")
    a.raw("s_add_u32 s41, s41, s39")

VQA = 16


def V(a, fmt, reads, writes, *args, **kw):
    a.valu(fmt % args, reads, writes, **kw)


def prologue(a):
    a.raw("s_load_dwordx4 s[4:7], s[0:1], 0")
    a.raw("s_load_dwordx4 s[8:11], s[0:1], 16")
    if PF:
        a.raw("s_getpc_b64 s[46:47]")
        a.label("L_pc")
        V(a, "v_lshlrev_b32 v%d, 7, v0", [0], [VT0], VT0)
        V(a, "v_subrev_u32 v%d, 0x8000, v%d", [VT0], [VT0], VT0, VT0)
        V(a, "v_min_u32 v%d, L_end-L_pc, v%d", [VT0], [VT0], VT0, VT0)
        a.vmem("global_load_dword v159, v%d, s[46:47]" % VT0, "PF", reads=[VT0], writes=[159])
    a.raw("s_and_b32 s12, s2, 7")
    a.raw("s_lshr_b32 s13, s2, 3")
    a.raw("s_lshr_b32 s14, s13, 2")
    a.raw("s_lshl_b32 s14, s14, 3")
    a.raw("s_add_u32 s14, s14, s12")
    a.raw("s_and_b32 s13, s13, 3")
    a.raw("s_lshl_b32 s15, s14, 2")
    a.raw("s_add_u32 s15, s15, s13")
    a.raw("s_mul_i32 s16, s14, 81920")
    a.raw("s_mul_i32 s17, s15, 81920")
    V(a, "v_lshrrev_b32 v%d, 6, v0", [0], [VT0], VT0)
    V(a, "v_and_b32 v%d, 63, v0", [0], [VLANE], VLANE)
    a.readfirstlane(SWAVE, VT0)
    L = VLANE
    V(a, "v_lshrrev_b32 v%d, 4, v%d", [L], [T0], T0, L)
    V(a, "v_and_b32 v%d, 15, v%d", [L], [T1], T1, L)
    V(a, "v_xor_b32 v%d, v%d, v%d", [T0, T1], [T2], T2, T0, T1)
    V(a, "v_lshlrev_b32 v%d, 4, v%d", [T2], [T2], T2, T2)
    V(a, "v_lshl_or_b32 v%d, v%d, 8, v%d", [T0, T2], [VDQ], VDQ, T0, T2)
    for i in range(1, 4):
        V(a, "v_xor_b32 v%d, %d, v%d", [VDQ], [VDQ + i], VDQ + i, i << 6, VDQ)
    a.raw("s_and_b32 s36, s%d, 3" % SWAVE)
    a.raw("s_lshr_b32 s37, s%d, 2" % SWAVE)
    a.raw("s_mul_i32 s38, s36, 80")
    a.raw("s_lshl_b32 s39, s37, 5")
    a.raw("s_add_u32 s38, s38, s39")
    a.raw("s_lshl_b32 s40, s%d, 10" % SWAVE)
    a.raw("s_and_b32 s42, s%d, 1" % SWAVE)
    a.raw("s_lshl_b32 s43, s42, 7")
    a.raw("s_mul_i32 s48, s13, 5")
    a.raw("s_add_u32 s48, s48, 1")
    a.raw("s_lshr_b32 s48, s48, 1")
    a.raw("s_mul_i32 s48, s48, %d" % (8192 if ROT else 0))
    a.raw("s_lshl_b32 s45, s38, 8")
    V(a, "v_and_b32 v%d, 31, v%d", [L], [T2], T2, L)
    V(a, "v_lshrrev_b32 v%d, 5, v%d", [L], [T3], T3, L)
    V(a, "v_add_u32 v%d, s38, v%d", [T2], [T4], T4, T2)
    V(a, "v_lshlrev_b32 v%d, 4, v%d", [T3], [T5], T5, T3)
    V(a, "v_lshl_or_b32 v%d, v%d, 8, v%d", [T4, T5], [VOFF], VOFF, T4, T5)
    a.raw("s_waitcnt lgkmcnt(0)")
    a.stamp(8)
    for (srd, lo, off) in ((SQ, 4, 17), (SK, 6, 16), (SV, 8, 16), (SO, 10, 17)):
        a.raw("s_add_u32 s%d, s%d, s%d" % (srd, lo, off))
        a.raw("s_addc_u32 s%d, s%d, 0" % (srd + 1, lo + 1))
        a.raw("s_mov_b32 s%d, 81920" % (srd + 2))
        a.raw("s_mov_b32 s%d, 0x00020000" % (srd + 3))
    a.raw("s_lshl_b32 s39, s36, 11")
    V(a, "v_xor_b32 v%d, s43, v%d", [VDQ], [VDK], VDK, VDQ)
    V(a, "v_xor_b32 v%d, 64, v%d", [VDK], [VDK2], VDK2, VDK)
    if ORDER != 3:
        a.raw("s_cmp_ge_u32 s%d, 4" % SWAVE)
        a.raw("s_cbranch_scc1 L_noqdma")
    for i in range(8):
        a.raw("s_add_u32 m0, s40, %d" % (i * 8192 + LDS_V))
        a.raw("s_add_u32 s41, s45, %d" % (i * 1024))
        a.vmem(("buffer_load_dwordx4 v%d, s[%d:%d], s41 offen" + QPOL + " lds") % (VDQ + (i & 3), SQ, SQ + 3), "Q", reads=[VDQ + (i & 3)])
    a.stamp(9)
    if ORDER == 3:
        a.raw("s_cmp_lt_u32 s%d, 4" % SWAVE)
        a.raw("s_cbranch_scc1 L_nokdma")
    else:
        a.raw("s_branch L_nokdma")
    a.label("L_noqdma")
    for n in range(DEPTH):
        b_item(a, n)
        if n == 0:
            a.stamp(10)
    a.stamp(11)
    a.label("L_nokdma")
    V(a, "v_lshlrev_b32 v%d, 1, v%d", [T0], [T3], T3, T0)
    V(a, "v_lshlrev_b32 v%d, 1, v%d", [T3], [T3], T3, T3)
    V(a, "v_xor_b32 v%d, v%d, v%d", [T3, T1], [T3], T3, T3, T1)
    V(a, "v_lshlrev_b32 v%d, 4, v%d", [T3], [T3], T3, T3)
    V(a, "v_lshl_or_b32 v%d, v%d, 8, v%d", [T0, T3], [VDV], VDV, T0, T3)
    V(a, "v_and_b32 v%d, 31, v%d", [L], [T2], T2, L)
    V(a, "v_lshrrev_b32 v%d, 5, v%d", [L], [T3], T3, L)
    V(a, "v_xor_b32 v%d, v%d, v%d", [T1, T3], [T4], T4, T1, T3)
    V(a, "v_lshlrev_b32 v%d, 4, v%d", [T4], [T4], T4, T4)
    V(a, "v_lshl_or_b32 v%d, v%d, 8, v%d", [T2, T4], [KA0], KA0, T2, T4)
    for kk in range(1, 8):
        V(a, "v_xor_b32 v%d, %d, v%d", [KA0], [KA0 + kk], KA0 + kk, kk << 5, KA0)
    V(a, "v_lshrrev_b32 v%d, 2, v%d", [T2], [T5], T5, T2)
    V(a, "v_lshl_or_b32 v%d, v%d, 13, v%d", [T5, T4], [T4], T4, T5, T4)
    V(a, "v_and_b32 v%d, 3, v%d", [T2], [T5], T5, T2)
    V(a, "v_lshl_or_b32 v%d, v%d, 8, v%d", [T5, T4], [T4], T4, T5, T4)
    a.raw("s_add_u32 s41, s40, %d" % LDS_V)
    V(a, "v_add_u32 v%d, s41, v%d", [T4], [VQA], VQA, T4)
    for kk in range(1, 8):
        V(a, "v_xor_b32 v%d, %d, v%d", [VQA], [VQA + kk], VQA + kk, kk << 5, VQA)
    V(a, "v_bfe_u32 v%d, v%d, 2, 2", [L], [T2], T2, L)
    V(a, "v_lshl_or_b32 v%d, v%d, 1, v%d", [T2, T3], [T4], T4, T2, T3)
    V(a, "v_bfe_u32 v%d, v%d, 4, 1", [L], [T5], T5, L)
    V(a, "v_xor_b32 v%d, v%d, v%d", [T4, T5], [T4], T4, T4, T5)
    V(a, "v_lshlrev_b32 v%d, 5, v%d", [T4], [T4], T4, T4)
    V(a, "v_lshl_add_u32 v%d, v%d, 2, v%d", [T3, T2], [T5], T5, T3, T2)
    V(a, "v_lshl_or_b32 v%d, v%d, 8, v%d", [T5, T4], [T4], T4, T5, T4)
    V(a, "v_and_b32 v%d, 3, v%d", [L], [T5], T5, L)
    V(a, "v_lshl_or_b32 v%d, v%d, 3, v%d", [T5, T4], [T4], T4, T5, T4)
    V(a, "v_add_u32 v%d, %d, v%d", [T4], [VA0], VA0, LDS_V, T4)
    for d in range(1, 4):
        V(a, "v_xor_b32 v%d, %d, v%d", [VA0], [VA0 + d], VA0 + d, d << 6, VA0)
    V(a, "v_mov_b32 v%d, 0xff800000", [], [VM], VM)
    V(a, "v_mov_b32 v%d, 0", [], [VL], VL)
    V(a, "v_mov_b32 v%d, 0", [], [VL2], VL2)
    V(a, "v_mov_b32 v%d, v%d", [VDV], [VT2], VT2, VDV)
    V(a, "v_xor_b32 v%d, 32, v%d", [VDV], [VT1], VT1, VDV)


def q_from_lds(a, extra=()):
    a.vm_q = ["Q"] * 8 + list(extra)
    a.wait_vm("Q")
    a.stamp(12)
    for kk in range(8):
        a.ds_read("ds_read_b128", Q0 + 4 * kk, 4, VQA + kk, 0, ("Q", kk))
    a.wait_lds(("Q", 7))


def k_dma_tile(a, n):
    for par in range(2):
        a.raw("s_add_u32 m0, s39, %d" % (n * 8192 + par * 1024))
        if par == 0:
            tile_off(a, n)
        else:
            a.raw("s_add_u32 s41, s41, 1024")
        r = VDK if par == 0 else VDK2
        a.vmem(("buffer_load_dwordx4 v%d, s[%d:%d], s41 offen" + KPOL + " lds") % (r, SK, SK + 3), "K%d" % n, reads=[r])


def b_item(a, i):
    items = [("K", n) for n in range(10)]
    qs = [("Q", n) for n in range(4)]
    vs = [("V", n) for n in range(10)]
    items += (vs + qs) if ORDER == 0 else (qs + vs)
    if ORDER == 2:
        items = qs + [("K", n) for n in range(10)] + vs
    if ORDER == 3:
        items = [("K", n) for n in range(10)] + vs
    if i >= len(items):
        return
    kind, n = items[i]
    if kind == "K":
        k_dma_tile(a, n)
    elif kind == "Q":
        for kk in (2 * n, 2 * n + 1):
            a.vmem(("buffer_load_dwordx4 v[%d:%d], v%d, s[%d:%d], 0 offen offset:%d" + QPOL) % (Q0 + 4 * kk, Q0 + 4 * kk + 3, VOFF, SQ, SQ + 3, 32 * kk),
                   "Q%d" % n, reads=[VOFF], writes=range(Q0 + 4 * kk, Q0 + 4 * kk + 4))
    else:
        v_dma_tile(a, n)


def v_dma_tile(a, n):
    for par in range(2):
        a.raw("s_add_u32 m0, s39, %d" % (n * 8192 + par * 1024 + LDS_V))
        if par == 0:
            tile_off(a, n)
        else:
            a.raw("s_add_u32 s41, s41, 1024")
        r = VT2 if par == 0 else VT1
        a.vmem(("buffer_load_dwordx4 v%d, s[%d:%d], s41 offen" + KPOL + " lds") % (r, SV, SV + 3), "V%d" % n, reads=[r])


def q_loads32(a):
    for kk in range(8):
        a.vmem("buffer_load_dwordx4 v[%d:%d], v%d, s[%d:%d], 0 offen offset:%d" % (Q0 + 4 * kk, Q0 + 4 * kk + 3, VOFF, SQ, SQ + 3, 32 * kk),
               "Q", reads=[VOFF], writes=range(Q0 + 4 * kk, Q0 + 4 * kk + 4))


def qk32(a, barriers, hook=None):
    def kread(t, kk):
        if t == 8 and kk == 0:
            for k2 in range(8):
                V(a, "v_add_u32 v%d, 0x10000, v%d", [KA0 + k2], [KA0 + k2], KA0 + k2, KA0 + k2)
        a.ds_read("ds_read_b128", KF0 + 4 * kk, 4, KA0 + kk, (t % 8) * 8192, ("K", t, kk))

    def maxops(t):
        return [(S0 + 16 * t + 2 * i, S0 + 16 * t + 2 * i + 1) for i in range(8)]

    if barriers == "KB":
        a.wait_vm("K0")
        a.raw("s_barrier")
        b_item(a, QOFS + DEPTH)
    if barriers == "K":
        a.raw("s_barrier")
        a.stamp(13)
    for kk in range(8):
        kread(0, kk)
    nb = 0
    for t in range(10):
        if barriers == "KB" and t < 9:
            a.wait_vm("K%d" % (t + 1))
            a.raw("s_barrier")
            b_item(a, QOFS + t + 1 + DEPTH)
        if barriers == "K" and t < 9:
            a.raw("s_barrier")
            if hook and t + 1 == Q16AT:
                hook()
        pend = maxops(t - 1) if t > 0 else []
        for kk in range(8):
            if barriers == "V":
                if kk == 0:
                    b_item(a, 14 + t + DEPTH)
                b_vbar(a, 8 * t + kk)
            a.wait_lds(("K", t, kk))
            a.mfma(True, S0 + 16 * t, KF0 + 4 * kk, Q0 + 4 * kk, czero=(kk == 0))
            if t < 9:
                kread(t + 1, kk)
            if kk >= 4:
                for _ in range(2):
                    if pend:
                        r0, r1 = pend.pop(0)
                        V(a, "v_max3_f32 v%d, v%d, v%d, v%d", [VM, r0, r1], [VM], VM, VM, r0, r1)
    for (r0, r1) in maxops(9):
        V(a, "v_max3_f32 v%d, v%d, v%d, v%d", [VM, r0, r1], [VM], VM, VM, r0, r1)
    V(a, "v_mov_b32 v%d, v%d", [VM], [VT0], VT0, VM)
    V(a, "v_permlane32_swap_b32 v%d, v%d", [VM, VT0], [VM, VT0], VM, VT0, perm=True)
    V(a, "v_max_f32 v%d, v%d, v%d", [VM, VT0], [VM], VM, VM, VT0)
    V(a, "v_mul_f32 v%d, 0x%08x, v%d", [VM], [VM], VM, NCBITS, VM)


def sm_work(a, base, regs=None, accs=None):
    R = regs if regs else [base + i for i in range(8)]
    AC = accs if accs else (VL, VL2)
    def f(i):
        return lambda: V(a, "v_fmamk_f32 v%d, v%d, 0x%08x, v%d", [R[i], VM], [R[i]], R[i], R[i], CBITS, VM)
    def e(i):
        return lambda: V(a, ("v_mov_b32 v%d, v%d" if NOEXP else "v_exp_f32 v%d, v%d"), [R[i]], [R[i]], R[i], R[i], trans=True)
    def ad(i):
        acc = AC[i & 1]
        return lambda: V(a, "v_add_f32 v%d, v%d, v%d", [acc, R[i]], [acc], acc, acc, R[i])
    def c(i):
        return lambda: V(a, "v_cvt_pk_bf16_f32 v%d, v%d, v%d", [R[2 * i], R[2 * i + 1]], [R[i]], R[i], R[2 * i], R[2 * i + 1])
    order = [f(0), f(1), f(2), f(3), e(0), f(4), e(1), f(5), e(2), f(6), e(3), f(7), e(4), ad(0), e(5), ad(1), e(6), c(0),
             e(7), ad(2), ad(3), c(1), ad(4), ad(5), c(2), ad(6), ad(7), c(3)]
    if NOSM:
        return []
    return order


def smpv32(a, q1_prefetch):
    groups = [(t, m) for t in range(10) for m in range(2)]
    mf = [(g, d) for g in range(20) for d in range(4)]
    avail = {"c": max([cum for (pb, cum, pa) in BARS if pb <= 80] + [0])}

    def vreads(n):
        g, d = mf[n]
        t, m = groups[g]
        assert t < avail["c"], (t, avail)
        if t == 8 and m == 0 and d == 0:
            for d2 in range(4):
                V(a, "v_add_u32 v%d, 0x10000, v%d", [VA0 + d2], [VA0 + d2], VA0 + d2, VA0 + d2)
        slot = n % RING
        for u in range(2):
            a.ds_read("ds_read_b64_tr_b16", RING0 + 4 * slot + 2 * u, 2, VA0 + d, (t % 8) * 8192 + m * 4096 + u * 2048, ("V", n))

    b_vbar(a, 80)
    for n in range(RING):
        vreads(n)
    for op in sm_work(a, S0 + 0):
        op()
    for g in range(20):
        nxt = sm_work(a, S0 + 8 * (g + 1)) if g < 19 else []
        if g > 0:
            b_vbar(a, 80 + g)
            avail["c"] = max([cum for (pb, cum, pa) in BARS if pb <= 80 + g] + [0])
        for d in range(4):
            n = 4 * g + d
            a.wait_lds(("V", n))
            if not NOPV or g == 0:
                a.mfma(True, O0 + 16 * d, RING0 + 4 * (n % RING), S0 + 8 * g, czero=(g == 0))
            if n + RING < 80:
                vreads(n + RING)
            for op in nxt[7 * d: 7 * d + 7]:
                op()


def sm_all(a, hook=None):
    for g in range(20):
        if hook:
            hook(g)
        for op in sm_work(a, S0 + 8 * g):
            op()


def epilogue32(a):
    V(a, "v_add_f32 v%d, v%d, v%d", [VL, VL2], [VL], VL, VL, VL2)
    V(a, "v_mov_b32 v%d, v%d", [VL], [VT0], VT0, VL)
    V(a, "v_permlane32_swap_b32 v%d, v%d", [VL, VT0], [VL, VT0], VL, VT0, perm=True)
    V(a, "v_add_f32 v%d, v%d, v%d", [VL, VT0], [VL], VL, VL, VT0)
    V(a, "v_rcp_f32 v%d, v%d", [VL], [VL], VL, VL, trans=True)
    for d in range(4):
        b = O0 + 16 * d
        for i in range(16):
            V(a, "v_mul_f32 v%d, v%d, v%d", [b + i, VL], [b + i], b + i, b + i, VL)
        for i in range(8):
            V(a, "v_cvt_pk_bf16_f32 v%d, v%d, v%d", [b + 2 * i, b + 2 * i + 1], [b + i], b + i, b + 2 * i, b + 2 * i + 1)
        for hf in range(2):
            x = b + 4 * hf
            V(a, "v_permlane32_swap_b32 v%d, v%d", [x, x + 2], [x, x + 2], x, x + 2, perm=True)
            V(a, "v_permlane32_swap_b32 v%d, v%d", [x + 1, x + 3], [x + 1, x + 3], x + 1, x + 3, perm=True)
        for hf in range(2):
            x = b + 4 * hf
            a.vmem(("buffer_store_dwordx4 v[%d:%d], v%d, s[%d:%d], 0 offen offset:%d" + STPOL) % (x, x + 3, VOFF, SO, SO + 3, 64 * d + 32 * hf),
                   "ST", reads=list(range(x, x + 4)) + [VOFF], store=True)


def hole(h):
    return S0 + 8 * h + 4


def q16(kk):
    return hole(kk)


S1 = 32
O1 = 112
KR16 = 160
KA1 = 224
VA1 = 228
VOFF1S = 236
U0, U1, U2, U3 = 237, 238, 239, 240
RING1 = 8
VL16 = VL


def va1(d):
    return VA1 + d


def o16(d):
    return O1 + 4 * d


def q16_loads(a):
    L = VLANE
    a.raw("s_add_u32 s44, s38, 64")
    V(a, "v_and_b32 v%d, 15, v%d", [L], [VT0], VT0, L)
    V(a, "v_add_u32 v%d, s44, v%d", [VT0], [VT0], VT0, VT0)
    V(a, "v_lshrrev_b32 v%d, 4, v%d", [L], [VT2], VT2, L)
    V(a, "v_lshlrev_b32 v%d, 4, v%d", [VT2], [VT2], VT2, VT2)
    V(a, "v_lshl_add_u32 v%d, v%d, 8, v%d", [VT0, VT2], [VT2], VT2, VT0, VT2)
    for kk in range(4):
        a.vmem(("buffer_load_dwordx4 v[%d:%d], v%d, s[%d:%d], 0 offen offset:%d" + QPOL) % (q16(kk), q16(kk) + 3, VT2, SQ, SQ + 3, 64 * kk),
               "Q1", reads=[VT2], writes=range(q16(kk), q16(kk) + 4))


def block16(a):
    L = VLANE
    V(a, "v_and_b32 v%d, 15, v%d", [L], [U0], U0, L)
    V(a, "v_lshrrev_b32 v%d, 4, v%d", [L], [U1], U1, L)
    V(a, "v_xor_b32 v%d, v%d, v%d", [U0, U1], [U2], U2, U0, U1)
    V(a, "v_lshlrev_b32 v%d, 4, v%d", [U2], [U2], U2, U2)
    V(a, "v_lshl_or_b32 v%d, v%d, 8, v%d", [U0, U2], [KA1], KA1, U0, U2)
    for kk in range(1, 4):
        V(a, "v_xor_b32 v%d, %d, v%d", [KA1], [KA1 + kk], KA1 + kk, kk << 6, KA1)
    V(a, "v_mov_b32 v%d, 0xff800000", [], [VM], VM)

    mf = [(t, kk) for t in range(20) for kk in range(4)]

    def kread(n):
        t, kk = mf[n]
        if t == 16 and kk == 0:
            for k2 in range(4):
                V(a, "v_add_u32 v%d, 0x10000, v%d", [KA1 + k2], [KA1 + k2], KA1 + k2, KA1 + k2)
        a.ds_read("ds_read_b128", KR16 + 4 * (n % RING1), 4, KA1 + kk, (t % 16) * 4096, ("K1", n))

    def mx(tt):
        b = S1 + 4 * tt
        V(a, "v_max3_f32 v%d, v%d, v%d, v%d", [VM, b, b + 1], [VM], VM, VM, b, b + 1)
        V(a, "v_max3_f32 v%d, v%d, v%d, v%d", [VM, b + 2, b + 3], [VM], VM, VM, b + 2, b + 3)
    for n in range(RING1):
        kread(n)
    V(a, "v_bfe_u32 v%d, v%d, 2, 2", [L], [U2], U2, L)
    V(a, "v_and_b32 v%d, 1, v%d", [U1], [U3], U3, U1)
    V(a, "v_lshl_or_b32 v%d, v%d, 1, v%d", [U2, U3], [U3], U3, U2, U3)
    V(a, "v_lshlrev_b32 v%d, 5, v%d", [U3], [U3], U3, U3)
    V(a, "v_lshl_add_u32 v%d, v%d, 2, v%d", [U1, U2], [U2], U2, U1, U2)
    V(a, "v_lshl_or_b32 v%d, v%d, 8, v%d", [U2, U3], [U3], U3, U2, U3)
    V(a, "v_and_b32 v%d, 3, v%d", [L], [U2], U2, L)
    V(a, "v_lshl_or_b32 v%d, v%d, 3, v%d", [U2, U3], [U3], U3, U2, U3)
    V(a, "v_add_u32 v%d, %d, v%d", [U3], [va1(0)], va1(0), LDS_V, U3)
    for d in range(1, 8):
        V(a, "v_xor_b32 v%d, %d, v%d", [va1(0)], [va1(d)], va1(d), d << 5, va1(0))
    V(a, "v_add_u32 v%d, s44, v%d", [U0], [U0], U0, U0)
    V(a, "v_and_b32 v%d, 1, v%d", [U1], [U2], U2, U1)
    V(a, "v_lshlrev_b32 v%d, 5, v%d", [U2], [U2], U2, U2)
    V(a, "v_lshrrev_b32 v%d, 1, v%d", [U1], [U3], U3, U1)
    V(a, "v_lshl_or_b32 v%d, v%d, 4, v%d", [U3, U2], [U2], U2, U3, U2)
    V(a, "v_lshl_add_u32 v%d, v%d, 8, v%d", [U0, U2], [VOFF1S], VOFF1S, U0, U2)
    V(a, "v_mov_b32 v%d, 0", [], [VL], VL)
    V(a, "v_mov_b32 v%d, 0", [], [VL2], VL2)
    a.wait_vm("Q1")
    a.stamp(6)
    for n in range(80):
        t, kk = mf[n]
        a.wait_lds(("K1", n))
        a.mfma(False, S1 + 4 * t, KR16 + 4 * (n % RING1), q16(kk), czero=(kk == 0))
        if n + RING1 < 80:
            kread(n + RING1)
        if kk == 3 and t >= 2:
            mx(t - 2)
    mx(18); mx(19)
    for sw in ("v_permlane16_swap_b32", "v_permlane32_swap_b32"):
        V(a, "v_mov_b32 v%d, v%d", [VM], [VT0], VT0, VM)
        V(a, "%s v%d, v%d", [VM, VT0], [VM, VT0], sw, VM, VT0, perm=True)
        V(a, "v_max_f32 v%d, v%d, v%d", [VM, VT0], [VM], VM, VM, VT0)
    V(a, "v_mul_f32 v%d, 0x%08x, v%d", [VM], [VM], VM, NCBITS, VM)
    seq = [(e, p, j) for e in range(4) for p in range(10) for j in range(2)]

    def vreads(n):
        e, p, j = seq[n]
        r = va1(2 * e + j)
        if p == 8:
            V(a, "v_add_u32 v%d, 0x10000, v%d", [r], [r], r, r)
        for u in range(2):
            aa = 2 * p + u
            a.ds_read("ds_read_b64_tr_b16", KR16 + 4 * (n % RING1) + 2 * u, 2, r, (aa % 16) * 4096, ("V1", n))
    R2 = 7
    for p in range(10):
        if p == 9:
            for n in range(R2):
                vreads(n)
        for op in sm_work(a, S1 + 8 * p):
            op()
    V(a, "v_add_f32 v%d, v%d, v%d", [VL, VL2], [VL], VL, VL, VL2)
    lsum16(a)
    a.stamp(10)
    pend = []
    for n in range(80):
        e, p, j = seq[n]
        a.wait_lds(("V1", n))
        a.mfma(False, o16(2 * e + j), KR16 + 4 * (n % RING1), S1 + 8 * p, czero=(p == 0))
        if n + R2 < 80:
            vreads(n + R2)
        if n % 20 == 3 and e > 0:
            pend = epi16_ops(a, e - 1)
        for _ in range(2):
            if pend:
                pend.pop(0)()
    assert not pend
    for op in epi16_ops(a, 3):
        op()


def lsum32(a):
    V(a, "v_mov_b32 v%d, v%d", [VL], [VT0], VT0, VL)
    V(a, "v_permlane32_swap_b32 v%d, v%d", [VL, VT0], [VL, VT0], VL, VT0, perm=True)
    V(a, "v_add_f32 v%d, v%d, v%d", [VL, VT0], [VL], VL, VL, VT0)
    V(a, "v_rcp_f32 v%d, v%d", [VL], [VL], VL, VL, trans=True)


def lsum16(a):
    for sw in ("v_permlane16_swap_b32", "v_permlane32_swap_b32"):
        V(a, "v_mov_b32 v%d, v%d", [VL16], [VT0], VT0, VL16)
        V(a, "%s v%d, v%d", [VL16, VT0], [VL16, VT0], sw, VL16, VT0, perm=True)
        V(a, "v_add_f32 v%d, v%d, v%d", [VL16, VT0], [VL16], VL16, VL16, VT0)
    V(a, "v_rcp_f32 v%d, v%d", [VL16], [VL16], VL16, VL16, trans=True)


def epi32_ops(a, d):
    ops = []
    b = O0 + 16 * d
    for i in range(16):
        ops.append(lambda i=i: V(a, "v_mul_f32 v%d, v%d, v%d", [b + i, VL], [b + i], b + i, b + i, VL))
    for i in range(8):
        ops.append(lambda i=i: V(a, "v_cvt_pk_bf16_f32 v%d, v%d, v%d", [b + 2 * i, b + 2 * i + 1], [b + i], b + i, b + 2 * i, b + 2 * i + 1))
    for hf in range(2):
        x = b + 4 * hf
        ops.append(lambda x=x: V(a, "v_permlane32_swap_b32 v%d, v%d", [x, x + 2], [x, x + 2], x, x + 2, perm=True))
        ops.append(lambda x=x: V(a, "v_permlane32_swap_b32 v%d, v%d", [x + 1, x + 3], [x + 1, x + 3], x + 1, x + 3, perm=True))
    for hf in range(2):
        x = b + 4 * hf
        ops.append(lambda x=x, hf=hf: a.vmem(("buffer_store_dwordx4 v[%d:%d], v%d, s[%d:%d], 0 offen offset:%d" + STPOL) % (x, x + 3, VOFF, SO, SO + 3, 64 * d + 32 * hf),
                                             "ST", reads=list(range(x, x + 4)) + [VOFF], store=True))
    return ops


def epi16_ops(a, e):
    ops = []
    x = o16(2 * e); y = o16(2 * e + 1)
    for r in list(range(x, x + 4)) + list(range(y, y + 4)):
        ops.append(lambda r=r: V(a, "v_mul_f32 v%d, v%d, v%d", [r, VL16], [r], r, r, VL16))
    ops.append(lambda: V(a, "v_cvt_pk_bf16_f32 v%d, v%d, v%d", [x, x + 1], [x], x, x, x + 1))
    ops.append(lambda: V(a, "v_cvt_pk_bf16_f32 v%d, v%d, v%d", [x + 2, x + 3], [x + 1], x + 1, x + 2, x + 3))
    ops.append(lambda: V(a, "v_cvt_pk_bf16_f32 v%d, v%d, v%d", [y, y + 1], [x + 2], x + 2, y, y + 1))
    ops.append(lambda: V(a, "v_cvt_pk_bf16_f32 v%d, v%d, v%d", [y + 2, y + 3], [x + 3], x + 3, y + 2, y + 3))
    ops.append(lambda: V(a, "v_permlane16_swap_b32 v%d, v%d", [x, x + 2], [x, x + 2], x, x + 2, perm=True))
    ops.append(lambda: V(a, "v_permlane16_swap_b32 v%d, v%d", [x + 1, x + 3], [x + 1, x + 3], x + 1, x + 3, perm=True))
    ops.append(lambda: a.vmem(("buffer_store_dwordx4 v[%d:%d], v%d, s[%d:%d], 0 offen offset:%d" + STPOL) % (x, x + 3, VOFF1S, SO, SO + 3, 64 * e),
                              "ST", reads=list(range(x, x + 4)) + [VOFF1S], store=True))
    return ops


VB0 = 240
RINGP = 4


def pv_dmajor(a, with16, hook=None):
    seq = []
    for d in range(4):
        for t in range(10):
            for m in range(2):
                seq.append(("b", t, m, d))
                if with16:
                    seq.append(("s", t, m, d))
    N = len(seq)
    per = N // 4
    for d in range(4):
        V(a, "v_add_u32 v%d, 0x10000, v%d", [VA0 + d], [VB0 + d], VB0 + d, VA0 + d)

    def vreads(n):
        kind, t, m, d = seq[n]
        slot = RING0 + 4 * (n % RINGP)
        if kind == "s" and t == 8:
            r = va1(2 * d + m)
            V(a, "v_add_u32 v%d, 0x10000, v%d", [r], [r], r, r)
        for u in range(2):
            if kind == "b":
                a.ds_read("ds_read_b64_tr_b16", slot + 2 * u, 2, (VA0 if t < 8 else VB0) + d, (t % 8) * 8192 + m * 4096 + u * 2048, ("V", n))
            else:
                aa = 2 * t + u
                a.ds_read("ds_read_b64_tr_b16", slot + 2 * u, 2, va1(2 * d + m), (aa % 16) * 4096, ("V", n))

    for n in range(RINGP):
        vreads(n)
    pend = []
    for n in range(N):
        kind, t, m, d = seq[n]
        slot = RING0 + 4 * (n % RINGP)
        if hook and n == Q16N:
            hook()
        a.wait_lds(("V", n))
        if kind == "b":
            a.mfma(True, O0 + 16 * d, slot, S0 + 8 * (2 * t + m), czero=(t == 0 and m == 0))
        else:
            a.mfma(False, o16(2 * d + m), slot, hole(2 * t), czero=(t == 0))
        if n + RINGP < N:
            vreads(n + RINGP)
        if n % per == EPD and d > 0:
            pend = epi32_ops(a, d - 1) + (epi16_ops(a, d - 1) if with16 else [])
        for _ in range(EPR):
            if pend:
                pend.pop(0)()
    assert not pend
    for op in epi32_ops(a, 3) + (epi16_ops(a, 3) if with16 else []):
        op()


def build():
    a = Asm()
    a.raw("s_cmp_ge_u32 s2, 256")
    a.raw("s_cbranch_scc1 L_end")
    if STAMP:
        for i in range(64, 96):
            a.raw("s_mov_b32 s%d, 0" % i)
    a.stamp(0)
    if STAMP:
        a.raw("s_memrealtime s[94:95]")
        a.raw("s_waitcnt lgkmcnt(0)")
    prologue(a)
    if PRIO:
        a.raw("s_cmp_ge_u32 s%d, 4" % SWAVE)
        a.raw("s_cbranch_scc1 L_noprio")
        a.raw("s_setprio %d" % PRIO)
        a.label("L_noprio")
    a.raw("s_cmp_ge_u32 s%d, 4" % SWAVE)
    a.raw("s_cbranch_scc1 L_bpre")
    q_from_lds(a)
    a.stamp(1)
    qk32(a, barriers="K")
    a.stamp(2)
    if PRIOA:
        a.raw("s_setprio %d" % PRIOA)
    a.fence()
    a.raw("s_branch L_common")
    a.label("L_bpre")
    a.lds_q = []
    a.fence()
    a.stamp(1)
    if ORDER == 2:
        a.vm_q = [("Q%d" % (n // 2) if n < 8 else "K%d" % ((n - 8) // 2)) for n in range(2 * DEPTH)]
        for i in range(4):
            a.wait_vm("Q%d" % i)
            b_item(a, i + DEPTH)
        a.stamp(12)
        qk32(a, barriers="KB")
        for i in range(14 + DEPTH, 24):
            b_item(a, i)
    elif ORDER == 3:
        q_from_lds(a, ["K%d" % (n // 2) for n in range(2 * DEPTH)])
        qk32(a, barriers="KB")
        for i in range(10 + DEPTH, 20):
            b_item(a, i)
    else:
        a.vm_q = ["K%d" % (n // 2) for n in range(2 * DEPTH)]
        for t in range(10):
            a.wait_vm("K%d" % t)
            a.raw("s_barrier")
            b_item(a, t + DEPTH)
    if ORDER == 0:
        for t in range(10):
            a.wait_vm("V%d" % t)
            if t == 9:
                a.raw("s_barrier")
            b_item(a, 10 + t + DEPTH)
        a.stamp(6)
        a.wait_vm("Q3")
        a.stamp(12)
        qk32(a, barriers=None)
    elif ORDER == 1:
        for i in range(4):
            a.wait_vm("Q%d" % i)
            b_item(a, 10 + i + DEPTH)
        a.stamp(12)
        qk32(a, barriers="V")
        a.wait_vm("V9")
        a.raw("s_barrier")
    a.stamp(2)
    a.fence()
    a.label("L_common")
    a.vm_q = []; a.lds_q = []

    def smhook(g):
        if ORDER >= 2 and g == BSPLIT:
            a.raw("s_cmp_lt_u32 s%d, 4" % SWAVE)
            a.raw("s_cbranch_scc1 L_nobarb")
            a.raw("s_waitcnt vmcnt(0)")
            a.raw("s_barrier")
            a.label("L_nobarb")
    sm_all(a, smhook)
    V(a, "v_add_f32 v%d, v%d, v%d", [VL, VL2], [VL], VL, VL, VL2)
    lsum32(a)
    a.stamp(3)
    a.raw("s_cmp_ge_u32 s%d, 4" % SWAVE)
    a.raw("s_cbranch_scc1 L_nobar")
    a.raw("s_barrier")
    a.label("L_nobar")
    a.stamp(4)

    def hook():
        a.raw("s_cmp_ge_u32 s%d, 4" % SWAVE)
        a.raw("s_cbranch_scc1 L_noq16")
        q16_loads(a)
        a.label("L_noq16")
    pv_dmajor(a, False, hook)
    a.stamp(5)
    a.raw("s_cmp_ge_u32 s%d, 4" % SWAVE)
    a.raw("s_cbranch_scc1 L_fin")
    block16(a)
    a.label("L_fin")
    if STAMP:
        a.raw("s_waitcnt vmcnt(0)")
        a.stamp(7)
        a.raw("s_memrealtime s[92:93]")
        a.raw("s_waitcnt lgkmcnt(0)")
        a.stamp_store()
    a.label("L_end")
    a.raw("s_endpgm")
    return a


if __name__ == "__main__":
    a = build()
    args = [x for x in sys.argv[1:] if not x.startswith("--")]
    out = args[0] if args else "standalone__gqa_softmax__near_ridge.s"
    open(out, "w").write(a.text())
    print("instructions:", len(a.lines), "nops:", a.nops)
```

```python
import sys, math

HEADER = """; Kernarg layout for this problem (48 bytes, ptrs only, base s[0:1]):
;   offset   0: d_in[0] q  shape=(8, 32, 320, 128) dtype=bfloat16 strides=(2621440, 81920, 256, 2) contiguous=True
;   offset   8: d_in[1] k  shape=(8, 8, 320, 128) dtype=bfloat16 strides=(655360, 81920, 256, 2) contiguous=True
;   offset  16: d_in[2] v  shape=(8, 8, 320, 128) dtype=bfloat16 strides=(655360, 81920, 256, 2) contiguous=True
; @launch grid=(256,1,1) block=(512,1,1) lds=163840
.amdgcn_target "amdgcn-amd-amdhsa--gfx950"
.text
.globl standalone__gqa_softmax__near_ridge_kernel
.p2align 8
.type standalone__gqa_softmax__near_ridge_kernel,@function
standalone__gqa_softmax__near_ridge_kernel:
"""
FOOTER = """.section .rodata,"a"
.p2align 6
.amdhsa_kernel standalone__gqa_softmax__near_ridge_kernel
  .amdhsa_next_free_vgpr 256
  .amdhsa_next_free_sgpr 100
  .amdhsa_accum_offset 256
  .amdhsa_group_segment_fixed_size 0
  .amdhsa_kernarg_size 48
  .amdhsa_user_sgpr_count 2
  .amdhsa_user_sgpr_kernarg_segment_ptr 1
  .amdhsa_system_sgpr_workgroup_id_x 1
.end_amdhsa_kernel
"""

LDS_V = 81920
DBGSTAMP = "--dbgstamp" in sys.argv
STAMP = "--stamp" in sys.argv or DBGSTAMP
NOEXP = "--noexp" in sys.argv
NOVREAD = "--novread" in sys.argv
NOSM = "--nosm" in sys.argv
NOPV = "--nopv" in sys.argv


class Asm:
    def __init__(self):
        self.lines = []
        self.slot = 0
        self.valu_w = {}
        self.trans_w = {}
        self.mfma_w = {}
        self.mfma_c = {}
        self.store_r = {}
        self.sgpr_valu_w = {}
        self.lds_q = []
        self.vm_q = []
        self.nops = 0

    def raw(self, text, cost=1):
        self.lines.append("    " + text)
        self.slot += cost

    def label(self, name):
        self.lines.append(name + ":")

    def comment(self, t):
        self.lines.append("    ; " + t)

    def need(self, pslot, ws):
        have = self.slot - pslot - 1
        if have < ws:
            k = ws - have
            self.nops += k
            while k > 0:
                n = min(k, 16)
                self.raw("s_nop %d" % (n - 1), cost=n)
                k -= n

    def fence(self):
        self.raw("s_nop 15", cost=16)
        self.valu_w.clear(); self.trans_w.clear(); self.mfma_w.clear(); self.mfma_c.clear()
        self.store_r.clear(); self.sgpr_valu_w.clear()

    MF_RD = {4: 8, 8: 12}
    MF_OV = {4: 6, 8: 10}
    MF_WAR = {4: 3, 8: 7}

    def _chk_read_any(self, regs):
        for r in regs:
            if r in self.mfma_w:
                s, p, _ = self.mfma_w[r]
                self.need(s, self.MF_RD[p])

    def valu(self, text, reads=(), writes=(), trans=False, perm=False, sreads=()):
        self._chk_read_any(reads)
        for r in reads:
            if not trans and r in self.trans_w:
                self.need(self.trans_w[r], 1)
            if perm and r in self.valu_w:
                self.need(self.valu_w[r], 2)
        for r in writes:
            if r in self.mfma_w:
                s, p, _ = self.mfma_w[r]
                self.need(s, self.MF_RD[p])
            if r in self.mfma_c:
                s, p = self.mfma_c[r]
                self.need(s, self.MF_WAR[p])
            if r in self.store_r:
                self.need(self.store_r[r], 2)
        for s in sreads:
            if s in self.sgpr_valu_w:
                self.need(self.sgpr_valu_w[s], 2)
        cur = self.slot
        self.raw(text)
        for r in writes:
            self.valu_w[r] = cur
            self.mfma_w.pop(r, None)
            if trans:
                self.trans_w[r] = cur
            else:
                self.trans_w.pop(r, None)

    def readfirstlane(self, sreg, vreg):
        if vreg in self.valu_w:
            self.need(self.valu_w[vreg], 1)
        cur = self.slot
        self.raw("v_readfirstlane_b32 s%d, v%d" % (sreg, vreg))
        self.sgpr_valu_w[sreg] = cur

    def mfma(self, big, d, a, b, czero=False):
        n = 16 if big else 4
        passes = 8 if big else 4
        name = "v_mfma_f32_32x32x16_bf16" if big else "v_mfma_f32_16x16x32_bf16"
        areg = list(range(a, a + 4)); breg = list(range(b, b + 4)); dreg = list(range(d, d + n))
        for r in areg + breg:
            if r in self.valu_w:
                self.need(self.valu_w[r], 2)
            if r in self.mfma_w:
                s, p, _ = self.mfma_w[r]
                self.need(s, self.MF_RD[p])
        if not czero:
            for r in dreg:
                if r in self.valu_w:
                    self.need(self.valu_w[r], 2)
                if r in self.mfma_w:
                    s, p, db = self.mfma_w[r]
                    if not (db == d and p == passes):
                        self.need(s, self.MF_OV[p])
        else:
            for r in dreg:
                if r in self.mfma_w:
                    s, p, db = self.mfma_w[r]
                    self.need(s, self.MF_RD[p])
        cur = self.slot
        c = "0" if czero else "v[%d:%d]" % (d, d + n - 1)
        self.raw("%s v[%d:%d], v[%d:%d], v[%d:%d], %s" % (name, d, d + n - 1, a, a + 3, b, b + 3, c))
        for r in dreg:
            self.mfma_w[r] = (cur, passes, d)
            self.valu_w.pop(r, None); self.trans_w.pop(r, None)
            if not czero:
                self.mfma_c[r] = (cur, passes)

    def ds_read(self, op, dst, nregs, addr, offset, tag):
        if NOVREAD and "tr" in op:
            return
        self._chk_read_any([addr])
        for r in range(dst, dst + nregs):
            if r in self.mfma_w:
                s, p, _ = self.mfma_w[r]
                self.need(s, self.MF_RD[p])
        assert 0 <= offset < 65536
        self.raw("%s v[%d:%d], v%d offset:%d" % (op, dst, dst + nregs - 1, addr, offset))
        for r in range(dst, dst + nregs):
            self.valu_w.pop(r, None); self.trans_w.pop(r, None); self.mfma_w.pop(r, None)
        self.lds_q.append(tag)

    def wait_lds(self, tag):
        if NOVREAD and tag[0] in ("V", "V1"):
            return
        if tag not in self.lds_q:
            return
        idx = max(i for i, t in enumerate(self.lds_q) if t == tag)
        n = len(self.lds_q) - 1 - idx
        assert n <= 15
        self.raw("s_waitcnt lgkmcnt(%d)" % n)
        self.lds_q = self.lds_q[idx + 1:]

    def vmem(self, text, tag, reads=(), writes=(), sreads=(), store=False):
        self._chk_read_any(reads)
        for r in writes:
            if r in self.mfma_w:
                s, p, _ = self.mfma_w[r]
                self.need(s, self.MF_RD[p])
        for s in sreads:
            if s in self.sgpr_valu_w:
                self.need(self.sgpr_valu_w[s], 5)
        cur = self.slot
        self.raw(text)
        for r in writes:
            self.valu_w.pop(r, None); self.trans_w.pop(r, None); self.mfma_w.pop(r, None)
        if store:
            for r in reads:
                self.store_r[r] = cur
        self.vm_q.append(tag)

    def wait_vm(self, tag):
        idx = max(i for i, t in enumerate(self.vm_q) if t == tag)
        n = len(self.vm_q) - 1 - idx
        assert n <= 63
        self.raw("s_waitcnt vmcnt(%d)" % n)
        self.vm_q = self.vm_q[idx + 1:]

    def stamp(self, i):
        if not STAMP:
            return
        self.raw("s_memtime s[%d:%d]" % (64 + 2 * i, 65 + 2 * i))
        self.raw("s_waitcnt lgkmcnt(0)")
        self.lds_q = []

    def stamp_store(self):
        if not STAMP:
            return
        if DBGSTAMP:
            self.raw("s_cmp_lg_u32 s2, 17")
            self.raw("s_cbranch_scc1 L_end")
            self.raw("s_and_b32 s12, s%d, 3" % SWAVE)
            self.raw("s_cmp_lg_u32 s12, 0")
            self.raw("s_cbranch_scc1 L_end")
            self.raw("s_load_dwordx2 s[4:5], s[0:1], 32")
            self.raw("s_waitcnt lgkmcnt(0)")
            self.raw("s_mov_b32 s6, 256")
            self.raw("s_mov_b32 s7, 0x00020000")
            self.raw("s_lshl_b32 s12, s%d, 3" % SWAVE)
            self.raw("s_sub_u32 s92, s92, s94")
            self.raw("s_nop 7", cost=8)
            for j, i in enumerate((11, 1, 2, 3, 4, 5, 7, 14)):
                if i != 14:
                    self.raw("s_sub_u32 s%d, s%d, s64" % (64 + 2 * i, 64 + 2 * i))
                self.raw("v_mov_b32 v1, s%d" % (64 + 2 * i))
                self.raw("v_mov_b32 v2, s12")
                self.raw("buffer_store_dword v1, v2, s[4:7], 0 offen offset:%d" % (4 * j))
                self.raw("s_nop 3", cost=4)
            return
        self.raw("s_load_dwordx2 s[4:5], s[0:1], 40")
        self.raw("s_waitcnt lgkmcnt(0)")
        self.raw("s_mov_b32 s6, 0x1000000")
        self.raw("s_mov_b32 s7, 0x00020000")
        self.raw("s_lshl_b32 s12, s2, 3")
        self.raw("s_add_u32 s12, s12, s%d" % SWAVE)
        self.raw("s_lshl_b32 s12, s12, 6")
        self.raw("s_nop 7", cost=8)
        for i in range(16):
            self.raw("v_mov_b32 v1, s%d" % (64 + 2 * i))
            self.raw("v_mov_b32 v2, s12")
            self.raw("buffer_store_dword v1, v2, s[4:7], 0 offen offset:%d" % (4 * i))
            self.raw("s_nop 3", cost=4)

    def text(self):
        return HEADER + "\n".join(self.lines) + "\n" + FOOTER


S0 = 0
O0 = 160
Q0 = 160
KF0 = 192
RING0 = 224
KA0 = 224
VA0 = 244
VM = 248
VL = 249
VOFF = 250
VLANE = 251
VT0 = 252
VT1 = 253
VT2 = 254
VL2 = 255
SQ, SK, SV, SO = 20, 24, 28, 32
SWAVE = 18
RING = 5
import struct
CBITS = struct.unpack("<I", struct.pack("<f", math.log2(math.e) / math.sqrt(128.0)))[0]
NCBITS = CBITS ^ 0x80000000


def opt(name, default):
    for x in sys.argv:
        if x.startswith("--%s=" % name):
            return int(x.split("=")[1])
    return default


PRIO = opt("prio", 0)
VAT = opt("vat", 9)
QAT = opt("qat", 9)
Q1AT = opt("q1at", 6)
VS = opt("vs", 5)
VPRE = opt("vpre", 4)
PF = opt("pf", 1)
STPOL = {0: "", 1: " nt", 2: " sc1", 3: " sc0 sc1", 4: " sc1 nt", 5: " sc0 sc1 nt"}[opt("stpol", 0)]
T0, T1, T2, T3, T4, T5 = 0, 1, 2, 3, 4, 5
VDK, VDV, VDQ = 232, 9, 10
VDK2 = 233
ROT = opt("rot", 1)
DEPTH = opt("depth", 4)
PA = opt("pa", 9)
PB = opt("pb", 5)
Q16AT = opt("q16at", 6)
POLS = {0: "", 1: " nt", 2: " sc1", 3: " sc0 sc1", 4: " sc1 nt", 5: " sc0 sc1 nt", 6: " sc0 nt"}
QPOL = POLS[opt("qpol", 0)]
KPOL = POLS[opt("kpol", 0)]
ORDER = opt("order", 0)
Q16N = opt("q16n", 0)
BSPLIT = opt("bsplit", 10)
PRIOA = opt("prioa", 0)
QOFS = 4 if ORDER == 2 else 0
ST128 = opt("st128", 1)
MSUM = opt("msum", 1)
NFB = opt("nfb", 4)
NF16 = opt("nf16", 4)
EPD = opt("epd", 2)
EPR = opt("epr", 3)
BARS = []
for x in sys.argv:
    if x.startswith("--bars="):
        BARS = [tuple(int(z) for z in y.split(":")) for y in x.split("=")[1].split(",")]


def b_vbar(a, pos):
    for (pb, cum, pa) in BARS:
        if pb == pos:
            a.wait_vm("V%d" % (cum - 1))
            a.raw("s_barrier")


def tile_off(a, n):
    a.raw("s_add_u32 s41, s48, %d" % (n * 8192))
    a.raw("s_cmp_ge_u32 s41, 81920")
    a.raw("s_cselect_b32 s49, 81920, 0")
    a.raw("s_sub_u32 s41, s41, s49")
    a.raw("s_add_u32 s41, s41, s39")

VQA = 16


def V(a, fmt, reads, writes, *args, **kw):
    a.valu(fmt % args, reads, writes, **kw)


def prologue(a):
    a.raw("s_load_dwordx4 s[4:7], s[0:1], 0")
    a.raw("s_load_dwordx4 s[8:11], s[0:1], 16")
    if PF:
        a.raw("s_getpc_b64 s[46:47]")
        a.label("L_pc")
        V(a, "v_lshlrev_b32 v%d, 7, v0", [0], [VT0], VT0)
        V(a, "v_subrev_u32 v%d, 0x8000, v%d", [VT0], [VT0], VT0, VT0)
        V(a, "v_min_u32 v%d, L_end-L_pc, v%d", [VT0], [VT0], VT0, VT0)
        a.vmem("global_load_dword v159, v%d, s[46:47]" % VT0, "PF", reads=[VT0], writes=[159])
    a.raw("s_and_b32 s12, s2, 7")
    a.raw("s_lshr_b32 s13, s2, 3")
    a.raw("s_lshr_b32 s14, s13, 2")
    a.raw("s_lshl_b32 s14, s14, 3")
    a.raw("s_add_u32 s14, s14, s12")
    a.raw("s_and_b32 s13, s13, 3")
    a.raw("s_lshl_b32 s15, s14, 2")
    a.raw("s_add_u32 s15, s15, s13")
    a.raw("s_mul_i32 s16, s14, 81920")
    a.raw("s_mul_i32 s17, s15, 81920")
    V(a, "v_lshrrev_b32 v%d, 6, v0", [0], [VT0], VT0)
    V(a, "v_and_b32 v%d, 63, v0", [0], [VLANE], VLANE)
    a.readfirstlane(SWAVE, VT0)
    L = VLANE
    V(a, "v_lshrrev_b32 v%d, 4, v%d", [L], [T0], T0, L)
    V(a, "v_and_b32 v%d, 15, v%d", [L], [T1], T1, L)
    V(a, "v_xor_b32 v%d, v%d, v%d", [T0, T1], [T2], T2, T0, T1)
    V(a, "v_lshlrev_b32 v%d, 4, v%d", [T2], [T2], T2, T2)
    V(a, "v_lshl_or_b32 v%d, v%d, 8, v%d", [T0, T2], [VDQ], VDQ, T0, T2)
    for i in range(1, 4):
        V(a, "v_xor_b32 v%d, %d, v%d", [VDQ], [VDQ + i], VDQ + i, i << 6, VDQ)
    a.raw("s_and_b32 s36, s%d, 3" % SWAVE)
    a.raw("s_lshr_b32 s37, s%d, 2" % SWAVE)
    a.raw("s_mul_i32 s38, s36, 80")
    a.raw("s_lshl_b32 s39, s37, 5")
    a.raw("s_add_u32 s38, s38, s39")
    a.raw("s_lshl_b32 s40, s%d, 10" % SWAVE)
    a.raw("s_and_b32 s42, s%d, 1" % SWAVE)
    a.raw("s_lshl_b32 s43, s42, 7")
    a.raw("s_mul_i32 s48, s13, 5")
    a.raw("s_add_u32 s48, s48, 1")
    a.raw("s_lshr_b32 s48, s48, 1")
    a.raw("s_mul_i32 s48, s48, %d" % (8192 if ROT else 0))
    a.raw("s_lshl_b32 s45, s38, 8")
    V(a, "v_and_b32 v%d, 31, v%d", [L], [T2], T2, L)
    V(a, "v_lshrrev_b32 v%d, 5, v%d", [L], [T3], T3, L)
    V(a, "v_add_u32 v%d, s38, v%d", [T2], [T4], T4, T2)
    V(a, "v_lshlrev_b32 v%d, 4, v%d", [T3], [T5], T5, T3)
    V(a, "v_lshl_or_b32 v%d, v%d, 8, v%d", [T4, T5], [VOFF], VOFF, T4, T5)
    a.raw("s_waitcnt lgkmcnt(0)")
    a.stamp(8)
    for (srd, lo, off) in ((SQ, 4, 17), (SK, 6, 16), (SV, 8, 16), (SO, 10, 17)):
        a.raw("s_add_u32 s%d, s%d, s%d" % (srd, lo, off))
        a.raw("s_addc_u32 s%d, s%d, 0" % (srd + 1, lo + 1))
        a.raw("s_mov_b32 s%d, 81920" % (srd + 2))
        a.raw("s_mov_b32 s%d, 0x00020000" % (srd + 3))
    a.raw("s_lshl_b32 s39, s36, 11")
    V(a, "v_xor_b32 v%d, s43, v%d", [VDQ], [VDK], VDK, VDQ)
    V(a, "v_xor_b32 v%d, 64, v%d", [VDK], [VDK2], VDK2, VDK)
    if ORDER != 3:
        a.raw("s_cmp_ge_u32 s%d, 4" % SWAVE)
        a.raw("s_cbranch_scc1 L_noqdma")
    for i in range(8):
        a.raw("s_add_u32 m0, s40, %d" % (i * 8192 + LDS_V))
        a.raw("s_add_u32 s41, s45, %d" % (i * 1024))
        a.vmem(("buffer_load_dwordx4 v%d, s[%d:%d], s41 offen" + QPOL + " lds") % (VDQ + (i & 3), SQ, SQ + 3), "Q", reads=[VDQ + (i & 3)])
    a.stamp(9)
    if ORDER == 3:
        a.raw("s_cmp_lt_u32 s%d, 4" % SWAVE)
        a.raw("s_cbranch_scc1 L_nokdma")
    else:
        a.raw("s_branch L_nokdma")
    a.label("L_noqdma")
    for n in range(DEPTH):
        b_item(a, n)
        if n == 0:
            a.stamp(10)
    a.stamp(11)
    a.label("L_nokdma")
    V(a, "v_lshlrev_b32 v%d, 1, v%d", [T0], [T3], T3, T0)
    V(a, "v_lshlrev_b32 v%d, 1, v%d", [T3], [T3], T3, T3)
    V(a, "v_xor_b32 v%d, v%d, v%d", [T3, T1], [T3], T3, T3, T1)
    V(a, "v_lshlrev_b32 v%d, 4, v%d", [T3], [T3], T3, T3)
    V(a, "v_lshl_or_b32 v%d, v%d, 8, v%d", [T0, T3], [VDV], VDV, T0, T3)
    V(a, "v_and_b32 v%d, 31, v%d", [L], [T2], T2, L)
    V(a, "v_lshrrev_b32 v%d, 5, v%d", [L], [T3], T3, L)
    V(a, "v_xor_b32 v%d, v%d, v%d", [T1, T3], [T4], T4, T1, T3)
    V(a, "v_lshlrev_b32 v%d, 4, v%d", [T4], [T4], T4, T4)
    V(a, "v_lshl_or_b32 v%d, v%d, 8, v%d", [T2, T4], [KA0], KA0, T2, T4)
    for kk in range(1, 8):
        V(a, "v_xor_b32 v%d, %d, v%d", [KA0], [KA0 + kk], KA0 + kk, kk << 5, KA0)
    V(a, "v_lshrrev_b32 v%d, 2, v%d", [T2], [T5], T5, T2)
    V(a, "v_lshl_or_b32 v%d, v%d, 13, v%d", [T5, T4], [T4], T4, T5, T4)
    V(a, "v_and_b32 v%d, 3, v%d", [T2], [T5], T5, T2)
    V(a, "v_lshl_or_b32 v%d, v%d, 8, v%d", [T5, T4], [T4], T4, T5, T4)
    a.raw("s_add_u32 s41, s40, %d" % LDS_V)
    V(a, "v_add_u32 v%d, s41, v%d", [T4], [VQA], VQA, T4)
    for kk in range(1, 8):
        V(a, "v_xor_b32 v%d, %d, v%d", [VQA], [VQA + kk], VQA + kk, kk << 5, VQA)
    V(a, "v_bfe_u32 v%d, v%d, 2, 2", [L], [T2], T2, L)
    V(a, "v_lshl_or_b32 v%d, v%d, 1, v%d", [T2, T3], [T4], T4, T2, T3)
    V(a, "v_bfe_u32 v%d, v%d, 4, 1", [L], [T5], T5, L)
    V(a, "v_xor_b32 v%d, v%d, v%d", [T4, T5], [T4], T4, T4, T5)
    V(a, "v_lshlrev_b32 v%d, 5, v%d", [T4], [T4], T4, T4)
    V(a, "v_lshl_add_u32 v%d, v%d, 2, v%d", [T3, T2], [T5], T5, T3, T2)
    V(a, "v_lshl_or_b32 v%d, v%d, 8, v%d", [T5, T4], [T4], T4, T5, T4)
    V(a, "v_and_b32 v%d, 3, v%d", [L], [T5], T5, L)
    V(a, "v_lshl_or_b32 v%d, v%d, 3, v%d", [T5, T4], [T4], T4, T5, T4)
    V(a, "v_add_u32 v%d, %d, v%d", [T4], [VA0], VA0, LDS_V, T4)
    for d in range(1, 4):
        V(a, "v_xor_b32 v%d, %d, v%d", [VA0], [VA0 + d], VA0 + d, d << 6, VA0)
    V(a, "v_mov_b32 v%d, 0xff800000", [], [VM], VM)
    V(a, "v_mov_b32 v%d, 0", [], [VL], VL)
    V(a, "v_mov_b32 v%d, 0", [], [VL2], VL2)
    V(a, "v_mov_b32 v%d, v%d", [VDV], [VT2], VT2, VDV)
    V(a, "v_xor_b32 v%d, 32, v%d", [VDV], [VT1], VT1, VDV)


def q_from_lds(a, extra=()):
    a.vm_q = ["Q"] * 8 + list(extra)
    a.wait_vm("Q")
    a.stamp(12)
    for kk in range(8):
        a.ds_read("ds_read_b128", Q0 + 4 * kk, 4, VQA + kk, 0, ("Q", kk))
    a.wait_lds(("Q", 7))


def k_dma_tile(a, n):
    for par in range(2):
        a.raw("s_add_u32 m0, s39, %d" % (n * 8192 + par * 1024))
        if par == 0:
            tile_off(a, n)
        else:
            a.raw("s_add_u32 s41, s41, 1024")
        r = VDK if par == 0 else VDK2
        a.vmem(("buffer_load_dwordx4 v%d, s[%d:%d], s41 offen" + KPOL + " lds") % (r, SK, SK + 3), "K%d" % n, reads=[r])


def b_item(a, i):
    items = [("K", n) for n in range(10)]
    qs = [("Q", n) for n in range(4)]
    vs = [("V", n) for n in range(10)]
    items += (vs + qs) if ORDER == 0 else (qs + vs)
    if ORDER == 2:
        items = qs + [("K", n) for n in range(10)] + vs
    if ORDER == 3:
        items = [("K", n) for n in range(10)] + vs
    if i >= len(items):
        return
    kind, n = items[i]
    if kind == "K":
        k_dma_tile(a, n)
    elif kind == "Q":
        for kk in (2 * n, 2 * n + 1):
            a.vmem(("buffer_load_dwordx4 v[%d:%d], v%d, s[%d:%d], 0 offen offset:%d" + QPOL) % (Q0 + 4 * kk, Q0 + 4 * kk + 3, VOFF, SQ, SQ + 3, 32 * kk),
                   "Q%d" % n, reads=[VOFF], writes=range(Q0 + 4 * kk, Q0 + 4 * kk + 4))
    else:
        v_dma_tile(a, n)


def v_dma_tile(a, n):
    for par in range(2):
        a.raw("s_add_u32 m0, s39, %d" % (n * 8192 + par * 1024 + LDS_V))
        if par == 0:
            tile_off(a, n)
        else:
            a.raw("s_add_u32 s41, s41, 1024")
        r = VT2 if par == 0 else VT1
        a.vmem(("buffer_load_dwordx4 v%d, s[%d:%d], s41 offen" + KPOL + " lds") % (r, SV, SV + 3), "V%d" % n, reads=[r])


def q_loads32(a):
    for kk in range(8):
        a.vmem("buffer_load_dwordx4 v[%d:%d], v%d, s[%d:%d], 0 offen offset:%d" % (Q0 + 4 * kk, Q0 + 4 * kk + 3, VOFF, SQ, SQ + 3, 32 * kk),
               "Q", reads=[VOFF], writes=range(Q0 + 4 * kk, Q0 + 4 * kk + 4))


def qk32(a, barriers, hook=None):
    def kread(t, kk):
        if t == 8 and kk == 0:
            for k2 in range(8):
                V(a, "v_add_u32 v%d, 0x10000, v%d", [KA0 + k2], [KA0 + k2], KA0 + k2, KA0 + k2)
        a.ds_read("ds_read_b128", KF0 + 4 * kk, 4, KA0 + kk, (t % 8) * 8192, ("K", t, kk))

    def maxops(t):
        return [(S0 + 16 * t + 2 * i, S0 + 16 * t + 2 * i + 1) for i in range(8)]

    if barriers == "KB":
        a.wait_vm("K0")
        a.raw("s_barrier")
        b_item(a, QOFS + DEPTH)
    if barriers == "K":
        a.raw("s_barrier")
        a.stamp(13)
    for kk in range(8):
        kread(0, kk)
    nb = 0
    for t in range(10):
        if barriers == "KB" and t < 9:
            a.wait_vm("K%d" % (t + 1))
            a.raw("s_barrier")
            b_item(a, QOFS + t + 1 + DEPTH)
        if barriers == "K" and t < 9:
            a.raw("s_barrier")
            if hook and t + 1 == Q16AT:
                hook()
        pend = maxops(t - 1) if t > 0 else []
        for kk in range(8):
            if barriers == "V":
                if kk == 0:
                    b_item(a, 14 + t + DEPTH)
                b_vbar(a, 8 * t + kk)
            a.wait_lds(("K", t, kk))
            a.mfma(True, S0 + 16 * t, KF0 + 4 * kk, Q0 + 4 * kk, czero=(kk == 0))
            if t < 9:
                kread(t + 1, kk)
            if kk >= 4:
                for _ in range(2):
                    if pend:
                        r0, r1 = pend.pop(0)
                        V(a, "v_max3_f32 v%d, v%d, v%d, v%d", [VM, r0, r1], [VM], VM, VM, r0, r1)
    for (r0, r1) in maxops(9):
        V(a, "v_max3_f32 v%d, v%d, v%d, v%d", [VM, r0, r1], [VM], VM, VM, r0, r1)
    V(a, "v_mov_b32 v%d, v%d", [VM], [VT0], VT0, VM)
    V(a, "v_permlane32_swap_b32 v%d, v%d", [VM, VT0], [VM, VT0], VM, VT0, perm=True)
    V(a, "v_max_f32 v%d, v%d, v%d", [VM, VT0], [VM], VM, VM, VT0)
    V(a, "v_mul_f32 v%d, 0x%08x, v%d", [VM], [VM], VM, NCBITS, VM)


def sm_work(a, base, regs=None, accs=None):
    R = regs if regs else [base + i for i in range(8)]
    AC = accs if accs else (VL, VL2)
    def f(i):
        return lambda: V(a, "v_fmamk_f32 v%d, v%d, 0x%08x, v%d", [R[i], VM], [R[i]], R[i], R[i], CBITS, VM)
    def e(i):
        return lambda: V(a, ("v_mov_b32 v%d, v%d" if NOEXP else "v_exp_f32 v%d, v%d"), [R[i]], [R[i]], R[i], R[i], trans=True)
    def ad(i):
        acc = AC[i & 1]
        return lambda: V(a, "v_add_f32 v%d, v%d, v%d", [acc, R[i]], [acc], acc, acc, R[i])
    def c(i):
        return lambda: V(a, "v_cvt_pk_bf16_f32 v%d, v%d, v%d", [R[2 * i], R[2 * i + 1]], [R[i]], R[i], R[2 * i], R[2 * i + 1])
    order = [f(0), f(1), f(2), f(3), e(0), f(4), e(1), f(5), e(2), f(6), e(3), f(7), e(4), ad(0), e(5), ad(1), e(6), c(0),
             e(7), ad(2), ad(3), c(1), ad(4), ad(5), c(2), ad(6), ad(7), c(3)]
    if MSUM:
        order = [f(0), f(1), f(2), f(3), e(0), f(4), e(1), f(5), e(2), f(6), e(3), f(7), e(4), c(0), e(5), e(6), c(1),
                 e(7), c(2), c(3)]
    if NOSM:
        return []
    return order


def hole_(h):
    return S0 + 8 * h + 4


PAT32, ACC32 = hole_(0), hole_(1)


def pat32_ops(a):
    L = VLANE
    p = PAT32
    ops = [lambda: V(a, "v_lshrrev_b32 v%d, 2, v%d", [L], [p + 1], p + 1, L),
           lambda: V(a, "v_xor_b32 v%d, v%d, v%d", [p + 1, L], [p + 1], p + 1, p + 1, L),
           lambda: V(a, "v_bfe_u32 v%d, v%d, 2, 1", [p + 1], [p + 1], p + 1, p + 1),
           lambda: V(a, "v_subrev_u32 v%d, 1, v%d", [p + 1], [p + 1], p + 1, p + 1),
           lambda: V(a, "v_and_b32 v%d, 0x3f803f80, v%d", [p + 1], [p], p, p + 1)]
    for i in range(1, 4):
        ops.append(lambda i=i: V(a, "v_mov_b32 v%d, v%d", [p], [p + i], p + i, p))
    return ops


def summ32(a, g):
    a.mfma(False, ACC32, PAT32, S0 + 8 * g, czero=(g == 0))


def smpv32(a, q1_prefetch):
    groups = [(t, m) for t in range(10) for m in range(2)]
    mf = [(g, d) for g in range(20) for d in range(4)]
    avail = {"c": max([cum for (pb, cum, pa) in BARS if pb <= 80] + [0])}

    def vreads(n):
        g, d = mf[n]
        t, m = groups[g]
        assert t < avail["c"], (t, avail)
        if t == 8 and m == 0 and d == 0:
            for d2 in range(4):
                V(a, "v_add_u32 v%d, 0x10000, v%d", [VA0 + d2], [VA0 + d2], VA0 + d2, VA0 + d2)
        slot = n % RING
        for u in range(2):
            a.ds_read("ds_read_b64_tr_b16", RING0 + 4 * slot + 2 * u, 2, VA0 + d, (t % 8) * 8192 + m * 4096 + u * 2048, ("V", n))

    b_vbar(a, 80)
    for n in range(RING):
        vreads(n)
    for op in sm_work(a, S0 + 0):
        op()
    for g in range(20):
        nxt = sm_work(a, S0 + 8 * (g + 1)) if g < 19 else []
        if g > 0:
            b_vbar(a, 80 + g)
            avail["c"] = max([cum for (pb, cum, pa) in BARS if pb <= 80 + g] + [0])
        for d in range(4):
            n = 4 * g + d
            a.wait_lds(("V", n))
            if not NOPV or g == 0:
                a.mfma(True, O0 + 16 * d, RING0 + 4 * (n % RING), S0 + 8 * g, czero=(g == 0))
            if n + RING < 80:
                vreads(n + RING)
            for op in nxt[7 * d: 7 * d + 7]:
                op()


def sm_all(a, hook=None):
    for g in range(20):
        if hook:
            hook(g)
        ops = sm_work(a, S0 + 8 * g)
        for i, op in enumerate(ops):
            op()
            if MSUM and g == 1 and i == 3:
                for o2 in pat32_ops(a):
                    o2()
            if MSUM and g >= 2 and i == 5:
                summ32(a, g - 2)
    if MSUM:
        summ32(a, 18)
        summ32(a, 19)


def lsum32_fin(a):
    if MSUM:
        V(a, "v_rcp_f32 v%d, v%d", [ACC32], [VL], VL, ACC32, trans=True)
    else:
        V(a, "v_add_f32 v%d, v%d, v%d", [VL, VL2], [VL], VL, VL, VL2)
        lsum32(a)


def smpv_fused(a, nf):
    for d in range(4):
        V(a, "v_add_u32 v%d, 0x10000, v%d", [VA0 + d], [VB0 + d], VB0 + d, VA0 + d)
    seq = [(g // 2, g % 2, d) for g in range(20) for d in range(nf)]
    n1 = len(seq)
    seq += [(t, m, d) for d in range(nf, 4) for t in range(10) for m in range(2)]
    N = len(seq)

    def vreads(n):
        t, m, d = seq[n]
        slot = RING0 + 4 * (n % RINGP)
        for u in range(2):
            a.ds_read("ds_read_b64_tr_b16", slot + 2 * u, 2, (VA0 if t < 8 else VB0) + d, (t % 8) * 8192 + m * 4096 + u * 2048, ("V", n))

    def mm(n):
        t, m, d = seq[n]
        a.wait_lds(("V", n))
        a.mfma(True, O0 + 16 * d, RING0 + 4 * (n % RINGP), S0 + 8 * (2 * t + m), czero=(t == 0 and m == 0))
        if n + RINGP < N:
            vreads(n + RINGP)

    for n in range(RINGP):
        vreads(n)
    if ST128:
        for op in vst_ops(a):
            op()
    for op in sm_work(a, S0):
        op()
    n = 0
    for g in range(20):
        nxt = sm_work(a, S0 + 8 * (g + 1)) if g < 19 else []
        if MSUM and g == 0:
            nxt = nxt[:4] + pat32_ops(a) + nxt[4:]
        ev = [("m", None)] * nf
        if MSUM and g >= 1:
            ev.insert(min(2, nf), ("s", g - 1))
        k = len(ev)
        per = (len(nxt) + k - 1) // k if k else len(nxt)
        pos = 0
        if not ev:
            for op in nxt:
                op()
        for (kind, arg) in ev:
            if kind == "m":
                mm(n); n += 1
            else:
                summ32(a, arg)
            for op in nxt[pos:pos + per]:
                op()
            pos += per
    assert n == n1
    if MSUM:
        summ32(a, 19)
    lsum32_fin(a)
    a.stamp(3)
    pend = []
    for d in range(nf):
        pend += epi32_ops(a, d)
    while n < N:
        t, m, d = seq[n]
        mm(n)
        if t == 1 and m == 0 and d > nf:
            pend += epi32_ops(a, d - 1)
        for _ in range(EPR):
            if pend:
                pend.pop(0)()
        n += 1
    if nf < 4:
        pend += epi32_ops(a, 3)
    for op in pend:
        op()


def epilogue32(a):
    V(a, "v_add_f32 v%d, v%d, v%d", [VL, VL2], [VL], VL, VL, VL2)
    V(a, "v_mov_b32 v%d, v%d", [VL], [VT0], VT0, VL)
    V(a, "v_permlane32_swap_b32 v%d, v%d", [VL, VT0], [VL, VT0], VL, VT0, perm=True)
    V(a, "v_add_f32 v%d, v%d, v%d", [VL, VT0], [VL], VL, VL, VT0)
    V(a, "v_rcp_f32 v%d, v%d", [VL], [VL], VL, VL, trans=True)
    for d in range(4):
        b = O0 + 16 * d
        for i in range(16):
            V(a, "v_mul_f32 v%d, v%d, v%d", [b + i, VL], [b + i], b + i, b + i, VL)
        for i in range(8):
            V(a, "v_cvt_pk_bf16_f32 v%d, v%d, v%d", [b + 2 * i, b + 2 * i + 1], [b + i], b + i, b + 2 * i, b + 2 * i + 1)
        for hf in range(2):
            x = b + 4 * hf
            V(a, "v_permlane32_swap_b32 v%d, v%d", [x, x + 2], [x, x + 2], x, x + 2, perm=True)
            V(a, "v_permlane32_swap_b32 v%d, v%d", [x + 1, x + 3], [x + 1, x + 3], x + 1, x + 3, perm=True)
        for hf in range(2):
            x = b + 4 * hf
            a.vmem(("buffer_store_dwordx4 v[%d:%d], v%d, s[%d:%d], 0 offen offset:%d" + STPOL) % (x, x + 3, VOFF, SO, SO + 3, 64 * d + 32 * hf),
                   "ST", reads=list(range(x, x + 4)) + [VOFF], store=True)


def hole(h):
    return S0 + 8 * h + 4


def q16(kk):
    return hole(kk)


S1 = 32
O1 = 112
KR16 = 160
KA1 = 224
VA1 = 228
VOFF1S = 236
U0, U1, U2, U3 = 237, 238, 239, 240
RING1 = 8
VL16 = VL


def va1(d):
    return VA1 + d


def o16(d):
    return O1 + 4 * d


def q16_loads(a):
    L = VLANE
    a.raw("s_add_u32 s44, s38, 64")
    V(a, "v_and_b32 v%d, 15, v%d", [L], [VT0], VT0, L)
    V(a, "v_add_u32 v%d, s44, v%d", [VT0], [VT0], VT0, VT0)
    V(a, "v_lshrrev_b32 v%d, 4, v%d", [L], [VT2], VT2, L)
    V(a, "v_lshlrev_b32 v%d, 4, v%d", [VT2], [VT2], VT2, VT2)
    V(a, "v_lshl_add_u32 v%d, v%d, 8, v%d", [VT0, VT2], [VT2], VT2, VT0, VT2)
    for kk in range(4):
        a.vmem(("buffer_load_dwordx4 v[%d:%d], v%d, s[%d:%d], 0 offen offset:%d" + QPOL) % (q16(kk), q16(kk) + 3, VT2, SQ, SQ + 3, 64 * kk),
               "Q1", reads=[VT2], writes=range(q16(kk), q16(kk) + 4))


def block16(a):
    L = VLANE
    V(a, "v_and_b32 v%d, 15, v%d", [L], [U0], U0, L)
    V(a, "v_lshrrev_b32 v%d, 4, v%d", [L], [U1], U1, L)
    V(a, "v_xor_b32 v%d, v%d, v%d", [U0, U1], [U2], U2, U0, U1)
    V(a, "v_lshlrev_b32 v%d, 4, v%d", [U2], [U2], U2, U2)
    V(a, "v_lshl_or_b32 v%d, v%d, 8, v%d", [U0, U2], [KA1], KA1, U0, U2)
    for kk in range(1, 4):
        V(a, "v_xor_b32 v%d, %d, v%d", [KA1], [KA1 + kk], KA1 + kk, kk << 6, KA1)
    V(a, "v_mov_b32 v%d, 0xff800000", [], [VM], VM)

    mf = [(t, kk) for t in range(20) for kk in range(4)]

    def kread(n):
        t, kk = mf[n]
        if t == 16 and kk == 0:
            for k2 in range(4):
                V(a, "v_add_u32 v%d, 0x10000, v%d", [KA1 + k2], [KA1 + k2], KA1 + k2, KA1 + k2)
        a.ds_read("ds_read_b128", KR16 + 4 * (n % RING1), 4, KA1 + kk, (t % 16) * 4096, ("K1", n))

    def mx(tt):
        b = S1 + 4 * tt
        V(a, "v_max3_f32 v%d, v%d, v%d, v%d", [VM, b, b + 1], [VM], VM, VM, b, b + 1)
        V(a, "v_max3_f32 v%d, v%d, v%d, v%d", [VM, b + 2, b + 3], [VM], VM, VM, b + 2, b + 3)
    for n in range(RING1):
        kread(n)
    V(a, "v_bfe_u32 v%d, v%d, 2, 2", [L], [U2], U2, L)
    V(a, "v_and_b32 v%d, 1, v%d", [U1], [U3], U3, U1)
    V(a, "v_lshl_or_b32 v%d, v%d, 1, v%d", [U2, U3], [U3], U3, U2, U3)
    V(a, "v_lshlrev_b32 v%d, 5, v%d", [U3], [U3], U3, U3)
    V(a, "v_lshl_add_u32 v%d, v%d, 2, v%d", [U1, U2], [U2], U2, U1, U2)
    V(a, "v_lshl_or_b32 v%d, v%d, 8, v%d", [U2, U3], [U3], U3, U2, U3)
    V(a, "v_and_b32 v%d, 3, v%d", [L], [U2], U2, L)
    V(a, "v_lshl_or_b32 v%d, v%d, 3, v%d", [U2, U3], [U3], U3, U2, U3)
    V(a, "v_add_u32 v%d, %d, v%d", [U3], [va1(0)], va1(0), LDS_V, U3)
    for d in range(1, 8):
        V(a, "v_xor_b32 v%d, %d, v%d", [va1(0)], [va1(d)], va1(d), d << 5, va1(0))
    V(a, "v_add_u32 v%d, s44, v%d", [U0], [U0], U0, U0)
    V(a, "v_and_b32 v%d, 1, v%d", [U1], [U2], U2, U1)
    V(a, "v_lshlrev_b32 v%d, 5, v%d", [U2], [U2], U2, U2)
    V(a, "v_lshrrev_b32 v%d, 1, v%d", [U1], [U3], U3, U1)
    V(a, "v_lshl_or_b32 v%d, v%d, 4, v%d", [U3, U2], [U2], U2, U3, U2)
    V(a, "v_lshl_add_u32 v%d, v%d, 8, v%d", [U0, U2], [VOFF1S], VOFF1S, U0, U2)
    V(a, "v_mov_b32 v%d, 0", [], [VL], VL)
    V(a, "v_mov_b32 v%d, 0", [], [VL2], VL2)
    a.wait_vm("Q1")
    a.stamp(6)
    for n in range(80):
        t, kk = mf[n]
        a.wait_lds(("K1", n))
        a.mfma(False, S1 + 4 * t, KR16 + 4 * (n % RING1), q16(kk), czero=(kk == 0))
        if n + RING1 < 80:
            kread(n + RING1)
        if kk == 3 and t >= 2:
            mx(t - 2)
    mx(18); mx(19)
    for sw in ("v_permlane16_swap_b32", "v_permlane32_swap_b32"):
        V(a, "v_mov_b32 v%d, v%d", [VM], [VT0], VT0, VM)
        V(a, "%s v%d, v%d", [VM, VT0], [VM, VT0], sw, VM, VT0, perm=True)
        V(a, "v_max_f32 v%d, v%d, v%d", [VM, VT0], [VM], VM, VM, VT0)
    V(a, "v_mul_f32 v%d, 0x%08x, v%d", [VM], [VM], VM, NCBITS, VM)
    nf = NF16
    seq = [(e, p, j) for p in range(10) for e in range(nf) for j in range(2)]
    n1 = len(seq)
    seq += [(e, p, j) for e in range(nf, 4) for p in range(10) for j in range(2)]
    N = len(seq)
    PAT16, ACC16 = 144, 148

    def vreads(n):
        e, p, j = seq[n]
        r = va1(2 * e + j)
        if p == 8:
            V(a, "v_add_u32 v%d, 0x10000, v%d", [r], [r], r, r)
        for u in range(2):
            aa = 2 * p + u
            a.ds_read("ds_read_b64_tr_b16", KR16 + 4 * (n % RING1) + 2 * u, 2, r, (aa % 16) * 4096, ("V1", n))
    R2 = 7

    def mm(n):
        e, p, j = seq[n]
        a.wait_lds(("V1", n))
        a.mfma(False, o16(2 * e + j), KR16 + 4 * (n % RING1), S1 + 8 * p, czero=(p == 0))
        if n + R2 < N:
            vreads(n + R2)

    def summ16(p):
        a.mfma(False, ACC16, PAT16, S1 + 8 * p, czero=(p == 0))

    if MSUM:
        for i in range(4):
            V(a, "v_mov_b32 v%d, 0x3f803f80", [], [PAT16 + i], PAT16 + i)
    if nf:
        for n in range(R2):
            vreads(n)
    for op in sm_work(a, S1):
        op()
    n = 0
    for p in range(10):
        nxt = sm_work(a, S1 + 8 * (p + 1)) if p < 9 else []
        if nf == 0 and p == 8:
            for n_ in range(R2):
                vreads(n_)
        ev = [("m", None)] * (2 * nf)
        if MSUM:
            ev.insert(min(2, 2 * nf), ("s", p))
        k = len(ev)
        if k == 1:
            for op in nxt[:4]:
                op()
            nxt = nxt[4:]
        per = (len(nxt) + k - 1) // k if k else len(nxt)
        pos = 0
        if not ev:
            for op in nxt:
                op()
        for (kind, arg) in ev:
            if kind == "m":
                mm(n); n += 1
            else:
                summ16(arg)
            for op in nxt[pos:pos + per]:
                op()
            pos += per
    assert n == n1
    if MSUM:
        V(a, "v_rcp_f32 v%d, v%d", [ACC16], [VL16], VL16, ACC16, trans=True)
    else:
        V(a, "v_add_f32 v%d, v%d, v%d", [VL, VL2], [VL], VL, VL, VL2)
        lsum16(a)
    a.stamp(10)
    pend = []
    for e in range(nf):
        pend += epi16_ops(a, e)
    while n < N:
        e, p, j = seq[n]
        mm(n)
        if p == 1 and j == 1 and e > nf:
            pend += epi16_ops(a, e - 1)
        for _ in range(2):
            if pend:
                pend.pop(0)()
        n += 1
    if nf < 4:
        pend += epi16_ops(a, 3)
    for op in pend:
        op()


def lsum32(a):
    V(a, "v_mov_b32 v%d, v%d", [VL], [VT0], VT0, VL)
    V(a, "v_permlane32_swap_b32 v%d, v%d", [VL, VT0], [VL, VT0], VL, VT0, perm=True)
    V(a, "v_add_f32 v%d, v%d, v%d", [VL, VT0], [VL], VL, VL, VT0)
    V(a, "v_rcp_f32 v%d, v%d", [VL], [VL], VL, VL, trans=True)


def lsum16(a):
    for sw in ("v_permlane16_swap_b32", "v_permlane32_swap_b32"):
        V(a, "v_mov_b32 v%d, v%d", [VL16], [VT0], VT0, VL16)
        V(a, "%s v%d, v%d", [VL16, VT0], [VL16, VT0], sw, VL16, VT0, perm=True)
        V(a, "v_add_f32 v%d, v%d, v%d", [VL16, VT0], [VL16], VL16, VL16, VT0)
    V(a, "v_rcp_f32 v%d, v%d", [VL16], [VL16], VL16, VL16, trans=True)


def epi32_ops(a, d):
    ops = []
    b = O0 + 16 * d
    for i in range(16):
        ops.append(lambda i=i: V(a, "v_mul_f32 v%d, v%d, v%d", [b + i, VL], [b + i], b + i, b + i, VL))
    for i in range(8):
        ops.append(lambda i=i: V(a, "v_cvt_pk_bf16_f32 v%d, v%d, v%d", [b + 2 * i, b + 2 * i + 1], [b + i], b + i, b + 2 * i, b + 2 * i + 1))
    for hf in range(2):
        x = b + 4 * hf
        ops.append(lambda x=x: V(a, "v_permlane32_swap_b32 v%d, v%d", [x, x + 2], [x, x + 2], x, x + 2, perm=True))
        ops.append(lambda x=x: V(a, "v_permlane32_swap_b32 v%d, v%d", [x + 1, x + 3], [x + 1, x + 3], x + 1, x + 3, perm=True))
    for hf in range(2):
        x = b + 4 * hf
        ops.append(lambda x=x, hf=hf: a.vmem(("buffer_store_dwordx4 v[%d:%d], v%d, s[%d:%d], 0 offen offset:%d" + STPOL) % (x, x + 3, VOFF, SO, SO + 3, 64 * d + 32 * hf),
                                             "ST", reads=list(range(x, x + 4)) + [VOFF], store=True))
    return ops


def epi16_ops(a, e):
    ops = []
    x = o16(2 * e); y = o16(2 * e + 1)
    for r in list(range(x, x + 4)) + list(range(y, y + 4)):
        ops.append(lambda r=r: V(a, "v_mul_f32 v%d, v%d, v%d", [r, VL16], [r], r, r, VL16))
    ops.append(lambda: V(a, "v_cvt_pk_bf16_f32 v%d, v%d, v%d", [x, x + 1], [x], x, x, x + 1))
    ops.append(lambda: V(a, "v_cvt_pk_bf16_f32 v%d, v%d, v%d", [x + 2, x + 3], [x + 1], x + 1, x + 2, x + 3))
    ops.append(lambda: V(a, "v_cvt_pk_bf16_f32 v%d, v%d, v%d", [y, y + 1], [x + 2], x + 2, y, y + 1))
    ops.append(lambda: V(a, "v_cvt_pk_bf16_f32 v%d, v%d, v%d", [y + 2, y + 3], [x + 3], x + 3, y + 2, y + 3))
    ops.append(lambda: V(a, "v_permlane16_swap_b32 v%d, v%d", [x, x + 2], [x, x + 2], x, x + 2, perm=True))
    ops.append(lambda: V(a, "v_permlane16_swap_b32 v%d, v%d", [x + 1, x + 3], [x + 1, x + 3], x + 1, x + 3, perm=True))
    ops.append(lambda: a.vmem(("buffer_store_dwordx4 v[%d:%d], v%d, s[%d:%d], 0 offen offset:%d" + STPOL) % (x, x + 3, VOFF1S, SO, SO + 3, 64 * e),
                              "ST", reads=list(range(x, x + 4)) + [VOFF1S], store=True))
    return ops


def vst_ops(a):
    L = VLANE
    return [lambda: V(a, "v_and_b32 v%d, 7, v%d", [L], [VT0], VT0, L),
            lambda: V(a, "v_add_u32 v%d, s38, v%d", [VT0], [VT0], VT0, VT0),
            lambda: V(a, "v_bfrev_b32 v%d, v%d", [L], [VOFF], VOFF, L),
            lambda: V(a, "v_bfe_u32 v%d, v%d, 26, 3", [VOFF], [VOFF], VOFF, VOFF),
            lambda: V(a, "v_lshlrev_b32 v%d, 4, v%d", [VOFF], [VOFF], VOFF, VOFF),
            lambda: V(a, "v_lshl_or_b32 v%d, v%d, 8, v%d", [VT0, VOFF], [VOFF], VOFF, VT0, VOFF),
            lambda: a.raw("s_movk_i32 s50, 0x1000"),
            lambda: a.raw("s_movk_i32 s51, 0x4000")]


def x8_ops(a, X, Y, T):
    ops = []
    for i in range(4):
        ops.append(lambda i=i: V(a, "v_mov_b32 v%d, v%d", [X + i], [T + i], T + i, X + i))
    for i in range(4):
        ops.append(lambda i=i: V(a, "v_mov_b32_dpp v%d, v%d row_ror:8 row_mask:0xf bank_mask:0xc", [Y + i], [X + i], X + i, Y + i, perm=True))
    for i in range(4):
        ops.append(lambda i=i: V(a, "v_mov_b32_dpp v%d, v%d row_ror:8 row_mask:0xf bank_mask:0x3", [T + i], [Y + i], Y + i, T + i, perm=True))
    return ops


def st_op(a, x, soff, off):
    return lambda: a.vmem(("buffer_store_dwordx4 v[%d:%d], v%d, s[%d:%d], %s offen offset:%d" + STPOL) % (x, x + 3, VOFF, SO, SO + 3, soff, off),
                          "ST", reads=list(range(x, x + 4)) + [VOFF], store=True)


_epi32_old = epi32_ops
_epi16_old = epi16_ops


def epi32_ops(a, d):
    if not ST128:
        return _epi32_old(a, d)
    ops = _epi32_old(a, d)[:-2]
    b = O0 + 16 * d
    for i in range(4):
        ops.append(lambda i=i: V(a, "v_permlane16_swap_b32 v%d, v%d", [b + i, b + 4 + i], [b + i, b + 4 + i], b + i, b + 4 + i, perm=True))
    if d & 1:
        D = d // 2
        b0 = b - 16
        for r4 in range(2):
            X, Y = b0 + 4 * r4, b + 4 * r4
            ops += x8_ops(a, X, Y, b0 + 8 + 4 * r4)
            so = "s50" if r4 else "0"
            ops.append(st_op(a, X, so, 128 * D))
            ops.append(st_op(a, Y, so, 2048 + 128 * D))
    return ops


def epi16_ops(a, e):
    if not ST128:
        return _epi16_old(a, e)
    ops = _epi16_old(a, e)[:-1]
    if e & 1:
        D = e // 2
        X, Y = o16(2 * e - 2), o16(2 * e)
        ops += x8_ops(a, X, Y, o16(2 * e - 1))
        ops.append(st_op(a, X, "s51", 128 * D))
        ops.append(st_op(a, Y, "s51", 2048 + 128 * D))
    return ops


VB0 = 240
RINGP = 4


def pv_dmajor(a, with16, hook=None):
    seq = []
    for d in range(4):
        for t in range(10):
            for m in range(2):
                seq.append(("b", t, m, d))
                if with16:
                    seq.append(("s", t, m, d))
    N = len(seq)
    per = N // 4
    for d in range(4):
        V(a, "v_add_u32 v%d, 0x10000, v%d", [VA0 + d], [VB0 + d], VB0 + d, VA0 + d)

    def vreads(n):
        kind, t, m, d = seq[n]
        slot = RING0 + 4 * (n % RINGP)
        if kind == "s" and t == 8:
            r = va1(2 * d + m)
            V(a, "v_add_u32 v%d, 0x10000, v%d", [r], [r], r, r)
        for u in range(2):
            if kind == "b":
                a.ds_read("ds_read_b64_tr_b16", slot + 2 * u, 2, (VA0 if t < 8 else VB0) + d, (t % 8) * 8192 + m * 4096 + u * 2048, ("V", n))
            else:
                aa = 2 * t + u
                a.ds_read("ds_read_b64_tr_b16", slot + 2 * u, 2, va1(2 * d + m), (aa % 16) * 4096, ("V", n))

    for n in range(RINGP):
        vreads(n)
    pend = []
    for n in range(N):
        kind, t, m, d = seq[n]
        slot = RING0 + 4 * (n % RINGP)
        if hook and n == Q16N:
            hook()
        a.wait_lds(("V", n))
        if kind == "b":
            a.mfma(True, O0 + 16 * d, slot, S0 + 8 * (2 * t + m), czero=(t == 0 and m == 0))
        else:
            a.mfma(False, o16(2 * d + m), slot, hole(2 * t), czero=(t == 0))
        if n + RINGP < N:
            vreads(n + RINGP)
        if n == 1 and ST128:
            pend += vst_ops(a)
        if n % per == EPD and d > 0:
            pend += epi32_ops(a, d - 1) + (epi16_ops(a, d - 1) if with16 else [])
        for _ in range(EPR):
            if pend:
                pend.pop(0)()
    for op in pend + epi32_ops(a, 3) + (epi16_ops(a, 3) if with16 else []):
        op()


def build():
    a = Asm()
    a.raw("s_cmp_ge_u32 s2, 256")
    a.raw("s_cbranch_scc1 L_end")
    if STAMP:
        for i in range(64, 96):
            a.raw("s_mov_b32 s%d, 0" % i)
    a.stamp(0)
    if STAMP:
        a.raw("s_memrealtime s[94:95]")
        a.raw("s_waitcnt lgkmcnt(0)")
    prologue(a)
    if PRIO:
        a.raw("s_cmp_ge_u32 s%d, 4" % SWAVE)
        a.raw("s_cbranch_scc1 L_noprio")
        a.raw("s_setprio %d" % PRIO)
        a.label("L_noprio")
    a.raw("s_cmp_ge_u32 s%d, 4" % SWAVE)
    a.raw("s_cbranch_scc1 L_bpre")
    q_from_lds(a)
    a.stamp(1)
    qk32(a, barriers="K")
    a.stamp(2)
    if PRIOA:
        a.raw("s_setprio %d" % PRIOA)
    a.fence()
    a.raw("s_branch L_common")
    a.label("L_bpre")
    a.lds_q = []
    a.fence()
    a.stamp(1)
    if ORDER == 2:
        a.vm_q = [("Q%d" % (n // 2) if n < 8 else "K%d" % ((n - 8) // 2)) for n in range(2 * DEPTH)]
        for i in range(4):
            a.wait_vm("Q%d" % i)
            b_item(a, i + DEPTH)
        a.stamp(12)
        qk32(a, barriers="KB")
        for i in range(14 + DEPTH, 24):
            b_item(a, i)
    elif ORDER == 3:
        q_from_lds(a, ["K%d" % (n // 2) for n in range(2 * DEPTH)])
        qk32(a, barriers="KB")
        for i in range(10 + DEPTH, 20):
            b_item(a, i)
    else:
        a.vm_q = ["K%d" % (n // 2) for n in range(2 * DEPTH)]
        for t in range(10):
            a.wait_vm("K%d" % t)
            a.raw("s_barrier")
            b_item(a, t + DEPTH)
    if ORDER == 0:
        for t in range(10):
            a.wait_vm("V%d" % t)
            if t == 9:
                a.raw("s_barrier")
            b_item(a, 10 + t + DEPTH)
        a.stamp(6)
        a.wait_vm("Q3")
        a.stamp(12)
        qk32(a, barriers=None)
    elif ORDER == 1:
        for i in range(4):
            a.wait_vm("Q%d" % i)
            b_item(a, 10 + i + DEPTH)
        a.stamp(12)
        qk32(a, barriers="V")
        a.wait_vm("V9")
        a.raw("s_barrier")
    a.stamp(2)
    if NFB >= 0:
        a.vm_q = []; a.lds_q = []
        smpv_fused(a, NFB)
        a.stamp(5)
        a.raw("s_branch L_fin")
    a.fence()
    a.label("L_common")
    a.vm_q = []; a.lds_q = []

    def smhook(g):
        if ORDER >= 2 and g == BSPLIT:
            a.raw("s_cmp_lt_u32 s%d, 4" % SWAVE)
            a.raw("s_cbranch_scc1 L_nobarb")
            a.raw("s_waitcnt vmcnt(0)")
            a.raw("s_barrier")
            a.label("L_nobarb")
    sm_all(a, smhook)
    lsum32_fin(a)
    a.stamp(3)
    a.raw("s_cmp_ge_u32 s%d, 4" % SWAVE)
    a.raw("s_cbranch_scc1 L_nobar")
    a.raw("s_barrier")
    a.label("L_nobar")
    a.stamp(4)

    def hook():
        a.raw("s_cmp_ge_u32 s%d, 4" % SWAVE)
        a.raw("s_cbranch_scc1 L_noq16")
        q16_loads(a)
        a.label("L_noq16")
    pv_dmajor(a, False, hook)
    a.stamp(5)
    a.raw("s_cmp_ge_u32 s%d, 4" % SWAVE)
    a.raw("s_cbranch_scc1 L_fin")
    block16(a)
    a.label("L_fin")
    if STAMP:
        a.raw("s_waitcnt vmcnt(0)")
        a.stamp(7)
        a.raw("s_memrealtime s[92:93]")
        a.raw("s_waitcnt lgkmcnt(0)")
        a.stamp_store()
    a.label("L_end")
    a.raw("s_endpgm")
    return a


if __name__ == "__main__":
    a = build()
    args = [x for x in sys.argv[1:] if not x.startswith("--")]
    out = args[0] if args else "standalone__gqa_softmax__near_ridge.s"
    open(out, "w").write(a.text())
    print("instructions:", len(a.lines), "nops:", a.nops)
```
